```python
import torch

def _softmax(x, axis=-1):
    return torch.softmax(x, dim=axis)
def _gelu(x):
    return torch.nn.functional.gelu(x, approximate="tanh")
def _silu(x):
    return torch.nn.functional.silu(x)
def _sigmoid(x):
    return torch.sigmoid(x)
def _layernorm(x, axis=-1, eps=1e-5):
    m = x.mean(dim=axis, keepdim=True)
    v = x.var(dim=axis, keepdim=True, unbiased=False)
    return (x - m) / torch.sqrt(v + eps)
def _scatter_add(tgt, idx, src, axis=0):
    return tgt.clone().index_add_(axis, idx, src)
def _segment_sum(src, seg, n):
    out = torch.zeros((n,) + src.shape[1:], dtype=src.dtype)
    return out.index_add_(0, seg, src)
def _pad(x, pw):
    flat = tuple(v for pair in reversed(pw) for v in pair)
    return torch.nn.functional.pad(x, flat)

kernel_name = 'parallel_sum__gqa_block_cached__swiglu_ffn__decode'

def setup_inputs():

    _w = (lambda a: (lambda t: t.to(torch.bfloat16) if t.is_floating_point() else t)(torch.as_tensor(a)))
    def _A_setup():
        B, Sq, D = 1, 1, 1024
        Hq, Hkv, Sk, Dh = 32, 4, 65536, 128
        assert Hq % Hkv == 0, (Hq, Hkv)
        return {
            "x": _w((lambda *s: torch.randn(*s, dtype=torch.bfloat16) * 0.05)(B, Sq, D)),
            "k_cache": _w((lambda *s: torch.randn(*s, dtype=torch.bfloat16) * 3.2)(B, Hkv, Sk, Dh)),
            "v_cache": _w((lambda *s: torch.randn(*s, dtype=torch.bfloat16) * 1.6)(B, Hkv, Sk, Dh)),
            "wq": _w((lambda *s: torch.randn(*s, dtype=torch.bfloat16) * 3.2)(D, Hq * Dh) * (D ** -0.5)),
            "wo": _w((lambda *s: torch.randn(*s, dtype=torch.bfloat16) * 1.6)(Hq * Dh, D) * ((Hq * Dh) ** -0.5)),
        }
    _A_in = _A_setup()

    def _B_setup():
        B, S, D, F = 1, 1, 1024, 3584
        return {
            "x": _w((lambda *s: torch.randn(*s, dtype=torch.bfloat16) * 0.05)(B, S, D)),
            "w_gate": _w((lambda *s: torch.randn(*s, dtype=torch.bfloat16) * 0.05)(D, F)),
            "w_up": _w((lambda *s: torch.randn(*s, dtype=torch.bfloat16) * 0.05)(D, F)),
            "w_down": _w((lambda *s: torch.randn(*s, dtype=torch.bfloat16) * 0.05)(F, D)),
        }
    _B_in = _B_setup()

    return {
        "A_x": _A_in["x"],
        "A_k_cache": _A_in["k_cache"],
        "A_v_cache": _A_in["v_cache"],
        "A_wq": _A_in["wq"],
        "A_wo": _A_in["wo"],
        "B_x": _B_in["x"],
        "B_w_gate": _B_in["w_gate"],
        "B_w_up": _B_in["w_up"],
        "B_w_down": _B_in["w_down"],
    }

def reference(A_x, A_k_cache, A_v_cache, A_wq, A_wo, B_x, B_w_gate, B_w_up, B_w_down):
    def _A_ref(x, k_cache, v_cache, wq, wo):
        B, Sq, D = x.shape
        Hq, Dh = 32, 128
        Hkv = k_cache.shape[1]
        rep = Hq // Hkv
        q = (lambda x, *d: x.permute(*d))((x @ wq).reshape(B, Sq, Hq, Dh), 0, 2, 1, 3)
        k = (lambda x, n, axis: torch.repeat_interleave(x, n, dim=axis))(k_cache, rep, axis=1)
        v = (lambda x, n, axis: torch.repeat_interleave(x, n, dim=axis))(v_cache, rep, axis=1)
        scores = torch.einsum("bhqd,bhkd->bhqk", q, k) * (Dh ** -0.5)
        p = _softmax(scores, axis=-1)
        o = torch.einsum("bhqk,bhkd->bhqd", p, v)
        return (lambda x, *d: x.permute(*d))(o, 0, 2, 1, 3).reshape(B, Sq, Hq * Dh) @ wo

    def _B_ref(x, w_gate, w_up, w_down):
        g = _silu(x @ w_gate)
        u = x @ w_up
        return (g * u) @ w_down

    x = A_x
    xn = _layernorm(x, axis=-1)
    return x + _A_ref(xn, A_k_cache, A_v_cache, A_wq, A_wo) + _B_ref(xn, B_w_gate, B_w_up, B_w_down)
```

```python
import re

def _regs(tok):
    tok = tok.strip()
    tok = tok.lstrip('-')
    m = re.fullmatch(r'abs\((.*)\)', tok) or re.fullmatch(r'\|(.*)\|', tok)
    if m: tok = m.group(1)
    m = re.fullmatch(r'([vsa])\[(\d+):(\d+)\]', tok)
    if m: return [(m.group(1), i) for i in range(int(m.group(2)), int(m.group(3)) + 1)]
    m = re.fullmatch(r'([vsa])(\d+)', tok)
    if m: return [(m.group(1), int(m.group(2)))]
    if tok in ('vcc', 'vcc_lo', 'vcc_hi'): return [('vcc', 0)]
    if tok in ('exec', 'exec_lo', 'exec_hi'): return [('exec', 0)]
    if tok == 'm0': return [('m0', 0)]
    return []

TRANS = ('v_exp_f32', 'v_rcp_f32', 'v_sqrt_f32', 'v_rsq_f32', 'v_log_f32', 'v_sin_f32', 'v_cos_f32')

class Ins:
    def __init__(self, text):
        self.text = text
        t = text.split(';')[0].strip()
        parts = t.split(None, 1)
        self.op = parts[0]
        rest = parts[1] if len(parts) > 1 else ''
        ops = [o.strip() for o in rest.split(',')] if rest else []
        toks = []
        for o in ops:
            toks.append(o.split()[0] if o.split() else '')
        self.toks = toks
        op = self.op
        self.mfma = op.startswith('v_mfma')
        self.valu = op.startswith('v_') and not self.mfma
        self.trans = any(op.startswith(x) for x in TRANS)
        self.dpp = '_dpp' in op or 'row_' in t or 'quad_perm' in t
        self.permlane = op.startswith('v_permlane')
        self.vmem = op.startswith('buffer_') or op.startswith('global_')
        self.ds = op.startswith('ds_')
        self.rdlane = op.startswith('v_readlane') or op.startswith('v_readfirstlane')
        self.w = []; self.r = []; self.srcC = []; self.srcAB = []
        R = [_regs(x) for x in toks]
        if self.mfma:
            self.w = R[0]; self.srcAB = R[1] + R[2]; self.srcC = R[3]; self.r = self.srcAB + self.srcC
        elif self.permlane:
            self.w = R[0] + R[1]; self.r = R[0] + R[1]
        elif self.valu:
            self.w = list(R[0]); self.r = sum(R[1:], [])
            if op.startswith('v_add_co') or op.startswith('v_sub_co') or op.startswith('v_addc_co') or op.startswith('v_div_scale'):
                self.w += R[1]; self.r = sum(R[2:], [])
            if op.startswith('v_fmac') or op.startswith('v_pk_fmac') or op.startswith('v_dot2c') or op.startswith('v_writelane') or self.dpp:
                self.r += R[0]
            if op.startswith('v_cndmask') and len(toks) == 3: self.r += [('vcc', 0)]
            if op.startswith('v_cmpx'): self.w += [('exec', 0)]
        elif self.vmem:
            if '_load' in op and ' lds' not in t:
                self.w = R[0]; self.r = sum(R[1:], [])
            elif 'atomic' in op and ' sc0' in t:
                self.w = R[0]; self.r = sum(R, [])
            else:
                self.r = sum(R, [])
        elif self.ds:
            if op.startswith('ds_read') or 'permute' in op or 'swizzle' in op or '_rtn' in op:
                self.w = R[0]; self.r = sum(R[1:], [])
            else:
                self.r = sum(R, [])
        else:
            pass
        self.widestore = self.vmem and ('store_dwordx4' in op or 'store_dwordx3' in op)
        self.storedata = []
        if self.widestore:
            self.storedata = R[0] if op.startswith('buffer_') else R[1]
        self.states = 1
        if op == 's_nop': self.states = int(toks[0], 0) + 1

def need(p, c):
    n = 0
    pw = set(p.w); cr = set(c.r); cw = set(c.w)
    pv = {x for x in pw if x[0] in 'va'}
    ps = {x for x in pw if x[0] in ('s', 'vcc')}
    if p.valu:
        if c.mfma and pv & cr: n = max(n, 2)
        if (c.dpp or c.permlane) and pv & cr: n = max(n, 2)
        if p.trans and (c.valu or c.mfma or c.ds or c.vmem) and pv & cr: n = max(n, 1)
        if c.rdlane and pv & cr: n = max(n, 1)
        if ps:
            if c.valu and ps & cr: n = max(n, 4 if (c.rdlane or c.op.startswith('v_writelane')) else 2)
            if c.vmem and ps & cr: n = max(n, 5)
            if c.op.startswith('v_div_fmas') and ('vcc', 0) in ps: n = max(n, 4)
        if ('exec', 0) in pw:
            if c.dpp: n = max(n, 5)
            if c.mfma or c.rdlane or c.permlane: n = max(n, 4)
    if p.mfma:
        assert '16x16x32' in p.op or '16x16x16' in p.op, p.op
        if c.mfma:
            if pv & set(c.srcAB): n = max(n, 8)
            if pv & set(c.srcC) and set(c.srcC) != pv: n = max(n, 6)
            if pv & cw and set(c.srcC) != pv: n = max(n, 8)
        elif (c.valu or c.vmem or c.ds) and (pv & cr or pv & cw): n = max(n, 8)
        if c.valu and set(p.srcC) & cw: n = max(n, 3)
    if p.widestore and set(p.storedata) & cw:
        n = max(n, 2 if c.valu else 1)
    return n

class Asm:
    def __init__(self):
        self.out = []
        self.hist = []
        self.labelhist = {}
        self.vm = []
        self.nops_added = 0
    def raw(self, s): self.out.append(s)
    def comment(self, s): self.out.append('    ; ' + s)
    def _age(self, k):
        for h in self.hist: h[1] += k
        self.hist = [h for h in self.hist if h[1] < 12]
    def __call__(self, text, tag=None):
        for line in text.split('\n'):
            line = line.strip()
            if not line: continue
            self._one(line, tag)
    def _one(self, line, tag):
        ins = Ins(line)
        req = 0
        for p, age in self.hist:
            req = max(req, need(p, ins) - age)
        if req > 0:
            self.out.append(f'    s_nop {req-1}')
            self.nops_added += 1
            self._age(req)
        self.out.append('    ' + line)
        self._age(ins.states)
        self.hist.append([ins, 0])
        if ins.vmem and tag is not False:
            self.vm.append(tag)
        if ins.op.startswith('s_cbranch') or ins.op == 's_branch':
            lab = ins.toks[0]
            self.labelhist.setdefault(lab, []).extend([[p, a] for p, a in self.hist])
            if ins.op == 's_branch': self.hist = []
    def label(self, name):
        self.out.append(name + ':')
        self.hist = [[p, a] for p, a in self.hist] + [[p, a] for p, a in self.labelhist.get(name, [])]
    def wait_vm(self, tag, extra=''):
        idx = max(i for i, t in enumerate(self.vm) if t == tag)
        n = len(self.vm) - 1 - idx
        assert n <= 63, n
        self(f's_waitcnt vmcnt({n}){extra}')
    def text(self): return '\n'.join(self.out) + '\n'
```

```python
import sys
from asmlib import Asm
NAME = "parallel_sum__gqa_block_cached__swiglu_ffn__decode"
HDR = open("cdna_kernels/" + NAME + ".s.ref").read().split("; Override launch")[0]

QP, ML, AB, OP, GU, WSN = 0x0, 0x10000, 0x20000, 0x100000, 0x200000, 0x300000
OOB = 0x40000000
L_QP, L_GU, L_Q, L_ML, L_W, L_H, L_C, L_O, L_AB, L_END = 0, 4096, 32768, 34816, 35328, 36352, 36608, 0, 40960, 73728
X, K, V, WQ, WGU, WO, WD, WS, DBG, OUT = [f"s[{b}:{b+3}]" for b in range(28, 68, 4)]
SPIN = 20000

def gen(stamps=False, nt=" nt", debug=False):
    a = Asm()
    nst = [0]
    stampregs = [86, 88, 90, 92, 94, 96, 98, 100, 4, 6, 8, 10, 12, 14, 16, 18]
    def stamp():
        if stamps:
            r = stampregs[nst[0]]; nst[0] += 1
            a(f"s_memrealtime s[{r}:{r+1}]")
    def srd(b, lo, n):
        a(f"s_mov_b32 s{b}, s{lo}\ns_mov_b32 s{b+1}, s{lo+1}\ns_mov_b32 s{b+2}, {n}\ns_mov_b32 s{b+3}, 0x20000")
    def allreduce_rows(v, t, op):
        a(f"v_mov_b32 v{t}, v{v}\nv_permlane32_swap_b32 v{v}, v{t}\n{op} v{v}, v{v}, v{t}")
        a(f"v_mov_b32 v{t}, v{v}\nv_permlane16_swap_b32 v{v}, v{t}\n{op} v{v}, v{v}, v{t}")
    def allreduce_inrow(v, op, steps=(8, 4, 2, 1)):
        for s in steps:
            a(f"{op}_dpp v{v}, v{v}, v{v} row_ror:{s} row_mask:0xf bank_mask:0xf")
    def treduce4(r):
        a(f"v_permlane32_swap_b32 v{r}, v{r+1}\nv_permlane32_swap_b32 v{r+2}, v{r+3}")
        a(f"v_add_f32 v{r}, v{r}, v{r+1}\nv_add_f32 v{r+2}, v{r+2}, v{r+3}")
        a(f"v_permlane16_swap_b32 v{r}, v{r+2}\nv_add_f32 v{r}, v{r}, v{r+2}")
    def afrag(xx):
        for d in range(4):
            a(f"v_and_b32 v{28+d}, v{xx}, v{2+d}")

    a.raw(HDR + f"; @launch grid=(256,1,1) block=(512,1,1) lds={L_END}")
    a.raw('.amdgcn_target "amdgcn-amd-amdhsa--gfx950"\n.text\n' + f".globl {NAME}_kernel\n.p2align 8\n.type {NAME}_kernel,@function\n{NAME}_kernel:")
    stamp()
    a("s_cmp_ge_u32 s2, 256\ns_cbranch_scc1 L_end")
    a("s_load_dwordx16 s[4:19], s[0:1], 0\ns_load_dwordx8 s[20:27], s[0:1], 64")
    a("v_lshrrev_b32 v12, 6, v0\nv_and_b32 v1, 63, v0\nv_readfirstlane_b32 s3, v12")
    a("v_lshrrev_b32 v12, 3, v1\nv_and_b32 v13, 7, v1")
    a("v_lshlrev_b32 v14, 5, v1")
    a("v_lshlrev_b32 v15, 1, v12")
    a("v_lshlrev_b32 v20, 4, v13")
    a("v_lshl_add_u32 v21, v12, 13, v20")
    a("s_movk_i32 s83, 7168\nv_mad_u32_u24 v22, v12, s83, v20")
    a("s_lshr_b32 s68, s2, 6")
    a("s_and_b32 s69, s2, 63")
    a("s_bfe_u32 s70, s2, 0x20004")
    a("s_lshl_b32 s70, s70, 3\ns_add_u32 s70, s70, s3\ns_lshl_b32 s70, s70, 5")
    a("s_lshl_b32 s71, s70, 1")
    a("s_lshl_b32 s72, s70, 13")
    a("s_lshl_b32 s73, s68, 11\ns_add_u32 s72, s72, s73")
    a("s_and_b32 s73, s2, 15\ns_lshl_b32 s73, s73, 7\ns_add_u32 s72, s72, s73")
    a("s_lshr_b32 s73, s2, 3\ns_lshl_b32 s73, s73, 2\ns_lshr_b32 s74, s3, 1\ns_add_u32 s73, s73, s74\ns_lshl_b32 s73, s73, 3")
    a("s_lshl_b32 s74, s73, 1")
    a("s_mul_i32 s75, s73, 7168\ns_and_b32 s83, s2, 7\ns_mul_i32 s83, s83, 896\ns_add_u32 s75, s75, s83")
    a("s_and_b32 s84, s2, 7\ns_lshl_b32 s84, s84, 5\ns_lshr_b32 s83, s2, 3\ns_add_u32 s84, s84, s83")
    a("s_lshl_b32 s85, s84, 3")
    a("v_lshrrev_b32 v23, 4, v1\nv_and_b32 v24, 1, v23\nv_lshrrev_b32 v25, 1, v23\nv_lshl_or_b32 v24, v24, 1, v25\nv_lshlrev_b32 v24, 1, v24")
    a("s_waitcnt lgkmcnt(0)")
    srd(28, 4, 2048); srd(40, 10, 8388608)
    a(f"buffer_load_dwordx4 v[104:107], v14, {X}, 0 offen", 'x')
    a(f"buffer_load_dwordx4 v[108:111], v14, {X}, 0 offen offset:16", 'x')
    for u in range(4):
        a(f"buffer_load_ushort v{96+u}, v15, {X}, s71 offen offset:{16*u}", 'x')
    a(f"buffer_load_ushort v100, v15, {X}, s74 offen", 'x')
    a(f"buffer_load_ushort v27, v24, {X}, s85 offen", 'x')
    for u in range(4):
        a(f"buffer_load_dwordx4 v[{32+4*u}:{35+4*u}], v21, {WQ}, s72 offen{nt}", 'wq')
        if u < 3: a("s_add_u32 s72, s72, 0x10000")
    srd(56, 26, WSN)
    a("v_mov_b32 v16, -1\nv_mov_b32 v17, -1\nv_mov_b32 v18, -1\nv_mov_b32 v19, -1")
    a(f"s_lshl_b32 s83, s68, 18\ns_lshl_b32 s82, s69, 8\ns_add_u32 s83, s83, s82\ns_add_u32 s83, s83, {OP}")
    a("v_lshrrev_b32 v8, 5, v0\nv_lshlrev_b32 v8, 14, v8\nv_and_b32 v9, 31, v0\nv_lshl_add_u32 v8, v9, 3, v8\nv_add_u32 v8, s83, v8")
    a(f"s_lshl_b32 s83, s2, 11\ns_add_u32 s83, s83, {AB}\nv_lshl_add_u32 v9, v0, 2, s83")
    a("s_lshr_b32 s83, s2, 3\ns_lshl_b32 s83, s83, 1\ns_lshr_b32 s82, s3, 2\ns_add_u32 s83, s83, s82\ns_mul_i32 s83, s83, 14336")
    a("s_and_b32 s82, s2, 7\ns_mul_i32 s82, s82, 1792\ns_add_u32 s83, s83, s82\ns_and_b32 s82, s3, 3\ns_mul_i32 s82, s82, 448\ns_add_u32 s83, s83, s82")
    a(f"s_add_u32 s83, s83, {GU}\nv_lshl_add_u32 v10, v1, 4, s83\nv_mov_b32 v26, {OOB}\nv_cmp_gt_u32 vcc, 28, v1\nv_cndmask_b32 v10, v26, v10, vcc")
    a(f"s_lshl_b32 s83, s68, 12\ns_lshl_b32 s82, s69, 5\ns_add_u32 s83, s83, s82\ns_add_u32 s83, s83, {ML}")
    a("v_lshrrev_b32 v11, 2, v0\nv_lshlrev_b32 v11, 11, v11\nv_and_b32 v25, 3, v0\nv_lshl_add_u32 v11, v25, 2, v11\nv_add_u32 v11, s83, v11")
    a("v_cmp_gt_u32 vcc, 8, v0\nv_cndmask_b32 v11, v26, v11, vcc")
    a(f"buffer_store_dwordx2 v[16:17], v8, {WS}, 0 offen sc1", 'clr')
    a(f"buffer_store_dword v16, v9, {WS}, 0 offen sc1", 'clr')
    a(f"buffer_store_dwordx4 v[16:19], v10, {WS}, 0 offen sc1", 'clr')
    a(f"buffer_store_dword v16, v11, {WS}, 0 offen sc1", 'clr')
    a(f"buffer_store_dword v16, v11, {WS}, 0 offen offset:16 sc1", 'clr')
    a("s_bitcmp1_b32 s3, 0\ns_cselect_b32 s44, s18, s16\ns_cselect_b32 s45, s19, s17\ns_mov_b32 s46, 7340032\ns_mov_b32 s47, 0x20000")
    for u in range(7):
        a(f"buffer_load_dwordx4 v[{48+4*u}:{51+4*u}], v22, {WGU}, s75 offen offset:{128*u}{nt}", 'wgu')
    a("s_getpc_b64 s[82:83]")
    a.label("L_pc")
    a("v_lshlrev_b32 v25, 5, v0\nv_min_u32 v25, L_end-L_pc-4, v25")
    a("global_load_dword v112, v25, s[82:83]", 'pf')
    srd(32, 6, 0x4000000); srd(36, 8, 0x4000000); srd(48, 12, 8388608); srd(52, 20, 7340032); srd(60, 24, 256); srd(64, 22, 2048)
    a("s_mov_b32 s76, 0x3db504f3\ns_mov_b32 s77, 0x3fb8aa3b\ns_mov_b32 s78, 0x05040100\ns_mov_b32 s79, 0x07060302")
    a("s_mov_b32 s80, 0x00ff00ff\ns_mov_b32 s81, 0xff00ff00")
    a("v_and_b32 v25, 1, v1\nv_cmp_eq_u32 vcc, 1, v25\nv_mov_b32 v25, 0xffff\nv_mov_b32 v26, 0xffff0000\nv_cndmask_b32 v25, v25, v26, vcc\nv_lshrrev_b32 v26, 1, v13")
    for d in range(4):
        a(f"v_cmp_eq_u32 vcc, {d}, v26\nv_cndmask_b32 v{2+d}, 0, v25, vcc")
    a("v_and_b32 v25, 15, v1\nv_lshlrev_b32 v6, 8, v25\nv_lshl_add_u32 v6, v23, 4, v6\nv_lshlrev_b32 v7, 4, v25\nv_lshl_add_u32 v7, v23, 10, v7")
    a("s_mov_b32 s22, s69\ns_mov_b32 s23, s68")
    a("s_lshr_b32 s20, s22, 3\ns_lshl_b32 s20, s20, 9\ns_lshl_b32 s83, s3, 4\ns_add_u32 s20, s20, s83\ns_and_b32 s83, s22, 7\ns_add_u32 s20, s20, s83\ns_lshl_b32 s20, s20, 11\ns_lshl_b32 s83, s23, 9\ns_add_u32 s20, s20, s83")
    a("s_mul_i32 s21, s22, 56\ns_lshl_b32 s82, s3, 3\ns_add_u32 s21, s21, s82\ns_lshl_b32 s21, s21, 11\ns_add_u32 s21, s21, s83\ns_cmp_eq_u32 s3, 7\ns_cselect_b32 s21, 7340032, s21")
    a("s_lshl_b32 s68, s23, 24\ns_lshl_b32 s83, s22, 3\ns_add_u32 s83, s83, s3\ns_lshl_b32 s83, s83, 12\ns_add_u32 s68, s68, s83")
    for t in range(1, 8):
        a(f"s_add_u32 s{68+t}, s68, {t << 21}")
    a(f"v_lshlrev_b32 v25, 3, v1\nds_write_b64 v25, v[16:17] offset:{L_ML}")
    a("v_and_b32 v25, 1, v23\nv_lshlrev_b32 v25, 4, v25\nv_lshl_add_u32 v14, v13, 5, v25")
    a("v_lshrrev_b32 v15, 5, v1")
    a.wait_vm('x')
    stamp()
    for i in range(8):
        a(f"v_lshlrev_b32 v{112+2*i}, 16, v{104+i}\nv_and_b32 v{113+2*i}, 0xffff0000, v{104+i}") if False else None
    for i in range(8):
        a(f"v_lshlrev_b32 v{76+2*i}, 16, v{104+i}\nv_and_b32 v{77+2*i}, 0xffff0000, v{104+i}")
    a("v_add_f32 v92, v76, v77")
    for i in range(2, 16): a(f"v_add_f32 v92, v92, v{76+i}")
    allreduce_inrow(92, "v_add_f32"); allreduce_rows(92, 93, "v_add_f32")
    a("v_mul_f32 v92, 0x3a800000, v92")
    for i in range(16): a(f"v_sub_f32 v{76+i}, v{76+i}, v92")
    a("v_mul_f32 v94, v76, v76")
    for i in range(1, 16): a(f"v_fmac_f32 v94, v{76+i}, v{76+i}")
    allreduce_inrow(94, "v_add_f32"); allreduce_rows(94, 93, "v_add_f32")
    a("v_mul_f32 v94, 0x3a800000, v94\nv_cvt_pk_bf16_f32 v94, v94, v92")
    a("v_and_b32 v92, 0xffff0000, v94\nv_lshlrev_b32 v94, 16, v94")
    a("v_add_f32 v94, 0x3727c5ac, v94\nv_cvt_pk_bf16_f32 v94, v94, v94\nv_and_b32 v94, 0xffff0000, v94")
    a("v_sqrt_f32 v94, v94\nv_cvt_pk_bf16_f32 v94, v94, v94\nv_and_b32 v94, 0xffff0000, v94\nv_rcp_f32 v95, v94")
    for i in range(5):
        r = 96 + i
        a(f"v_lshlrev_b32 v{r}, 16, v{r}\nv_sub_f32 v{r}, v{r}, v92\nv_cvt_pk_bf16_f32 v{r}, v{r}, v{r}\nv_and_b32 v{r}, 0xffff0000, v{r}")
        a(f"v_mul_f32 v76, v{r}, v95\nv_fma_f32 v77, -v76, v94, v{r}\nv_fma_f32 v76, v77, v95, v76\nv_cvt_pk_bf16_f32 v{r}, v76, v76")
    a.wait_vm('clr')
    for u in range(4):
        afrag(96 + u)
        a(f"v_mfma_f32_16x16x32_bf16 v[76:79], v[28:31], v[{32+4*u}:{35+4*u}], {'0' if u == 0 else 'v[76:79]'}")
    a("s_lshl_b32 s83, s3, 9\nv_lshl_add_u32 v25, v15, 8, v14\nv_add_u32 v25, s83, v25")
    a(f"s_mov_b64 exec, s[80:81]\nds_write_b128 v25, v[76:79] offset:{L_QP}\ns_mov_b64 exec, -1")
    a("s_waitcnt lgkmcnt(0)\ns_barrier")
    stamp()
    a("s_cmp_lg_u32 s3, 0\ns_cbranch_scc1 L_noqpub")
    a("v_lshlrev_b32 v25, 2, v1")
    for k in range(8):
        a(f"ds_read2st64_b32 v[{76+2*k}:{77+2*k}], v25 offset0:{(L_QP>>8)+2*k} offset1:{(L_QP>>8)+2*k+1}")
    a("s_lshr_b32 s83, s2, 4\ns_lshl_b32 s83, s83, 12\ns_and_b32 s82, s2, 15\ns_lshl_b32 s82, s82, 8\ns_add_u32 s83, s83, s82")
    a("s_waitcnt lgkmcnt(0)")
    for k in range(1, 16): a(f"v_add_f32 v76, v76, v{76+k}")
    a(f"buffer_store_dword v76, v25, {WS}, s83 offen sc1", False)
    a("v_mov_b32 v77, 1\nv_mov_b32 v78, 0\ns_waitcnt vmcnt(0)\ns_mov_b64 exec, 1")
    a(f"buffer_store_byte v77, v78, {DBG}, s2 offen sc1", False)
    a("s_mov_b64 exec, -1")
    a.label("L_noqpub")
    def kload(t):
        for j in range(4):
            r = 128 + 16*t + 4*j
            a(f"buffer_load_dwordx4 v[{r}:{r+3}], v6, {K}, s{68+t} offen offset:{64*j}{nt}", f'k{t}')
    def vload(t):
        for j in range(4):
            r = 128 + 16*t + 4*j
            a(f"buffer_load_dwordx4 v[{r}:{r+3}], v7, {V}, s{68+t} offen offset:{256*j}{nt}", f'v{t}')
    kload(0); kload(1)
    afrag(100)
    a.wait_vm('wgu')
    for u in range(7):
        a(f"v_mfma_f32_16x16x32_bf16 v[{76+4*u}:{79+4*u}], v[28:31], v[{48+4*u}:{51+4*u}], 0")
    a("s_and_b32 s83, s3, 1\ns_lshl_b32 s83, s83, 3\ns_and_b32 s82, s3, 6\ns_add_u32 s83, s83, s82\nv_add_u32 v25, s83, v15\ns_movk_i32 s83, 1792\nv_mad_u32_u24 v25, v25, s83, v14")
    a("s_mov_b64 exec, s[80:81]")
    for u in range(7):
        a(f"ds_write_b128 v25, v[{76+4*u}:{79+4*u}] offset:{L_GU + 256*u}")
    a("s_mov_b64 exec, -1")
    a("s_cmp_lg_u32 s3, 0\ns_cbranch_scc1 L_noq")
    a(f"v_lshlrev_b32 v25, 2, v1\ns_mov_b32 s82, {SPIN}\ns_mov_b32 s83, 0x01010101")
    a.label("L_flagpoll")
    a(f"buffer_load_dword v26, v25, {DBG}, 0 offen sc1", False)
    a("s_sub_u32 s82, s82, 1\ns_cbranch_scc1 L_flagdone\ns_waitcnt vmcnt(0)\nv_cmp_ne_u32 vcc, s83, v26\ns_cbranch_vccz L_flagdone\ns_sleep 2\ns_branch L_flagpoll")
    a.label("L_flagdone")
    stamp()
    a("v_lshlrev_b32 v25, 4, v1\ns_lshl_b32 s83, s23, 14")
    for ks in range(4):
        for qd in range(4):
            r = 192 + 16*ks + 4*qd
            a(f"buffer_load_dwordx4 v[{r}:{r+3}], v25, {WS}, s83 offen offset:{1024*qd} sc1", False)
        if ks < 3: a("s_add_u32 s83, s83, 4096")
    a("v_lshlrev_b32 v25, 3, v1\ns_waitcnt vmcnt(0)")
    for i in range(16):
        a(f"v_add_f32 v{192+i}, v{192+i}, v{208+i}\nv_add_f32 v{224+i}, v{224+i}, v{240+i}")
    for i in range(16):
        a(f"v_add_f32 v{192+i}, v{192+i}, v{224+i}")
    for i in range(8):
        a(f"v_cvt_pk_bf16_f32 v{208+i}, v{192+2*i}, v{193+2*i}")
    for qd in range(4):
        a(f"ds_write_b64 v25, v[{208+2*qd}:{209+2*qd}] offset:{L_Q + 512*qd}")
    a("s_waitcnt lgkmcnt(0)")
    if stamps:
        a("s_branch L_noq2")
    a.label("L_noq")
    if stamps:
        nst[0] -= 1; stamp()
        a.label("L_noq2")
    stamp()
    for t in range(2, 8): kload(t)
    a("s_waitcnt lgkmcnt(0)\ns_barrier")
    stamp()
    a("v_lshlrev_b32 v25, 8, v13\nv_lshl_add_u32 v25, v23, 4, v25")
    for j in range(4):
        a(f"ds_read_b128 v[{32+4*j}:{35+4*j}], v25 offset:{L_Q + 64*j}")
    a("s_lshr_b32 s83, s3, 2\ns_mul_i32 s83, s83, 14336\ns_and_b32 s82, s3, 3\ns_mul_i32 s82, s82, 448\ns_add_u32 s83, s83, s82")
    a("v_min_u32 v26, 27, v1\nv_lshl_add_u32 v26, v26, 4, s83")
    for k in range(8):
        a(f"ds_read_b128 v[{80+4*k}:{83+4*k}], v26 offset:{L_GU + 1792*k}")
    a("s_waitcnt lgkmcnt(0)")
    for k in range(1, 8):
        for i in range(4): a(f"v_add_f32 v{80+i}, v{80+i}, v{80+4*k+i}")
    a(f"buffer_store_dwordx4 v[80:83], v10, {WS}, 0 offen sc1", 'gu')
    for t in range(8):
        a.wait_vm(f'k{t}')
        for j in range(4):
            r = 128 + 16*t + 4*j
            a(f"v_mfma_f32_16x16x32_bf16 v[{48+4*t}:{51+4*t}], v[{r}:{r+3}], v[{32+4*j}:{35+4*j}], {'0' if j == 0 else f'v[{48+4*t}:{51+4*t}]'}")
    stamp()
    vload(0); vload(1)
    for k in range(16):
        r = 48 + 2*k
        a(f"v_cvt_pk_bf16_f32 v25, v{r}, v{r+1}\nv_lshlrev_b32 v{r}, 16, v25\nv_and_b32 v{r+1}, 0xffff0000, v25")
        a(f"v_mul_f32 v{r}, s76, v{r}\nv_mul_f32 v{r+1}, s76, v{r+1}")
        a(f"v_cvt_pk_bf16_f32 v25, v{r}, v{r+1}\nv_lshlrev_b32 v{r}, 16, v25\nv_and_b32 v{r+1}, 0xffff0000, v25")
        if k == 0: a(f"v_max_f32 v16, v{r}, v{r+1}")
        else: a(f"v_max3_f32 v16, v16, v{r}, v{r+1}")
    allreduce_rows(16, 25, "v_max_f32")
    a("v_mul_f32 v18, s77, v16")
    for k in range(32):
        a(f"v_fma_f32 v{80+k}, v{48+k}, s77, -v18")
    for k in range(32):
        a(f"v_exp_f32 v{80+k}, v{80+k}")
    for k in range(16): a(f"v_add_f32 v{80+k}, v{80+k}, v{96+k}")
    for k in range(8): a(f"v_add_f32 v{80+k}, v{80+k}, v{88+k}")
    for k in range(4): a(f"v_add_f32 v{80+k}, v{80+k}, v{84+k}")
    a("v_add_f32 v80, v80, v81\nv_add_f32 v82, v82, v83\nv_add_f32 v17, v80, v82")
    allreduce_rows(17, 25, "v_add_f32")
    a(f"s_lshl_b32 s83, s3, 6\nv_lshl_add_u32 v25, v13, 3, s83\nds_write_b64 v25, v[16:17] offset:{L_ML}")
    for t in range(2, 8): vload(t)
    a("v_lshl_add_u32 v21, v12, 11, v20")
    for cb in range(4):
        a(f"buffer_load_dwordx4 v[{112+4*cb}:{115+4*cb}], v21, {WD}, s21 offen offset:{128*cb}{nt}", 'wd')
    a("v_and_b32 v22, 3, v12\nv_lshlrev_b32 v22, 4, v22\nv_add_u32 v22, v22, v15\nv_lshl_add_u32 v22, v22, 14, v20")
    for cb in range(4):
        a(f"buffer_load_dwordx4 v[{32+4*cb}:{35+4*cb}], v22, {WO}, s20 offen offset:{128*cb}{nt}", 'wo')
    stamp()
    a(f"v_lshlrev_b32 v25, 3, v1\ns_mov_b32 s82, {SPIN*8}")
    a.label("L_mlspin")
    a(f"ds_read_b64 v[16:17], v25 offset:{L_ML}\ns_sub_u32 s82, s82, 1\ns_cbranch_scc1 L_mldone\ns_waitcnt lgkmcnt(0)\nv_cmp_u_f32 vcc, v16, v17\ns_cbranch_vccz L_mldone\ns_sleep 1\ns_branch L_mlspin")
    a.label("L_mldone")
    a("s_waitcnt lgkmcnt(0)\nv_mov_b32 v18, v16")
    allreduce_inrow(18, "v_max_f32", (8,)); allreduce_rows(18, 25, "v_max_f32")
    a("s_cmp_lg_u32 s3, 0\ns_cbranch_scc1 L_nomlpub")
    a("v_sub_f32 v16, v16, v18\nv_mul_f32 v16, s77, v16\nv_exp_f32 v16, v16\nv_mul_f32 v17, v16, v17")
    allreduce_inrow(17, "v_add_f32", (8,)); allreduce_rows(17, 25, "v_add_f32")
    a(f"buffer_store_dword v18, v11, {WS}, 0 offen sc1", False)
    a(f"buffer_store_dword v17, v11, {WS}, 0 offen offset:16 sc1", False)
    a.label("L_nomlpub")
    a("v_mul_f32 v19, s77, v18")
    for k in range(32): a(f"v_fma_f32 v{48+k}, v{48+k}, s77, -v19")
    for k in range(32): a(f"v_exp_f32 v{48+k}, v{48+k}")
    for k in range(16): a(f"v_cvt_pk_bf16_f32 v{48+k}, v{48+2*k}, v{49+2*k}")
    for b in range(4):
        a.wait_vm(f'v{2*b+1}')
        for e in range(8):
            tmp = 64 + 4*(e & 3)
            for jj in range(4):
                lo = 128 + 32*b + 8*jj + (e >> 1); hi = lo + 4
                a(f"v_perm_b32 v{tmp+jj}, v{hi}, v{lo}, s{78 + (e & 1)}")
            a(f"v_mfma_f32_16x16x32_bf16 v[{80+4*e}:{83+4*e}], v[{48+4*b}:{51+4*b}], v[{tmp}:{tmp+3}], {'0' if b == 0 else f'v[{80+4*e}:{83+4*e}]'}")
    stamp()
    a("s_lshl_b32 s83, s3, 12\nv_and_b32 v25, 15, v1\nv_lshlrev_b32 v25, 4, v25\nv_lshl_add_u32 v25, v23, 11, v25\nv_add_u32 v25, s83, v25")
    a("s_mov_b32 exec_hi, 0")
    for e in range(8):
        a(f"ds_write_b128 v25, v[{80+4*e}:{83+4*e}] offset:{L_O + 256*e}")
    a("s_mov_b64 exec, -1")
    a("s_cmp_lg_u32 s3, 0\ns_cbranch_scc1 L_nomgr")
    a(f"v_and_b32 v25, 15, v1\ns_movk_i32 s83, 28672\nv_mul_u32_u24 v26, s83, v23\nv_lshl_add_u32 v26, v25, 4, v26\nv_cmp_gt_u32 vcc, 14, v25\nv_mov_b32 v25, {OOB}\nv_cndmask_b32 v26, v25, v26, vcc")
    a(f"s_mov_b32 s82, {SPIN}")
    a.label("L_hpoll")
    a(f"s_mul_i32 s83, s22, 224\ns_add_u32 s83, s83, {GU}")
    for kk in range(8):
        for mat in range(2):
            r = 128 + 32*mat + 4*kk
            a(f"buffer_load_dwordx4 v[{r}:{r+3}], v26, {WS}, s83 offen sc1", False)
            a(f"s_add_u32 s83, s83, {14336 if mat == 0 else 114688 - 14336}")
    a("s_waitcnt vmcnt(0)")
    for mat in range(2):
        for kk in range(1, 8):
            for i in range(4): a(f"v_add_f32 v{128+32*mat+i}, v{128+32*mat+i}, v{128+32*mat+4*kk+i}")
    treduce4(128); treduce4(160)
    a("s_sub_u32 s82, s82, 1\ns_cbranch_scc1 L_hdone\nv_cmp_u_f32 vcc, v128, v160\ns_cbranch_vccz L_hdone\ns_sleep 2\ns_branch L_hpoll")
    a.label("L_hdone")
    a("v_cvt_pk_bf16_f32 v128, v128, v160\nv_and_b32 v160, 0xffff0000, v128\nv_lshlrev_b32 v128, 16, v128")
    a("v_mul_f32 v129, s77, v128\nv_exp_f32 v129, -v129\nv_add_f32 v129, 1.0, v129\nv_rcp_f32 v129, v129\nv_mul_f32 v128, v128, v129")
    a("v_cvt_pk_bf16_f32 v128, v128, v128\nv_and_b32 v128, 0xffff0000, v128\nv_mul_f32 v128, v128, v160\nv_cvt_pk_bf16_f32 v128, v128, v128")
    a(f"v_and_b32 v25, 15, v1\nv_lshlrev_b32 v25, 4, v25\nv_lshl_add_u32 v25, v24, 1, v25\nds_write_b32 v25, v128 offset:{L_H}")
    a(f"s_lshr_b32 s83, s22, 3\ns_lshl_b32 s83, s83, 11\ns_add_u32 s83, s83, {ML}\nv_lshlrev_b32 v26, 5, v1\ns_mov_b32 s82, {SPIN}")
    a.label("L_wpoll")
    a(f"buffer_load_dwordx4 v[128:131], v26, {WS}, s83 offen sc1", False)
    a(f"buffer_load_dwordx4 v[132:135], v26, {WS}, s83 offen offset:16 sc1", False)
    a("s_waitcnt vmcnt(0)")
    for i in range(4): a(f"v_mov_b32 v{136+i}, v{128+i}")
    for s in (8, 4, 2, 1):
        for i in range(4): a(f"v_max_f32_dpp v{136+i}, v{136+i}, v{136+i} row_ror:{s} row_mask:0xf bank_mask:0xf")
    for i in range(4): allreduce_rows(136+i, 140, "v_max_f32")
    for i in range(4): a(f"v_sub_f32 v{128+i}, v{128+i}, v{136+i}\nv_mul_f32 v{128+i}, s77, v{128+i}")
    for i in range(4): a(f"v_exp_f32 v{128+i}, v{128+i}")
    for i in range(4): a(f"v_mul_f32 v{132+i}, v{128+i}, v{132+i}")
    for s in (8, 4, 2, 1):
        for i in range(4): a(f"v_add_f32_dpp v{132+i}, v{132+i}, v{132+i} row_ror:{s} row_mask:0xf bank_mask:0xf")
    for i in range(4): allreduce_rows(132+i, 140, "v_add_f32")
    a("v_add_f32 v140, v132, v133\nv_add_f32 v141, v134, v135")
    a("s_sub_u32 s82, s82, 1\ns_cbranch_scc1 L_wdone\nv_cmp_u_f32 vcc, v140, v141\ns_cbranch_vccz L_wdone\ns_sleep 2\ns_branch L_wpoll")
    a.label("L_wdone")
    for i in range(4): a(f"v_rcp_f32 v{132+i}, v{132+i}")
    for i in range(4): a(f"v_mul_f32 v{128+i}, v{128+i}, v{132+i}")
    a(f"v_lshlrev_b32 v25, 4, v1\nds_write_b128 v25, v[128:131] offset:{L_W}")
    a.label("L_nomgr")
    a("v_lshlrev_b32 v16, 3, v0")
    a(f"s_lshl_b32 s24, s22, 14\ns_lshl_b32 s83, s3, 11\ns_add_u32 s24, s24, s83\ns_add_u32 s24, s24, {OP}")
    a("v_lshlrev_b32 v17, 4, v1")
    a("s_lshl_b32 s83, s3, 7\nv_lshl_add_u32 v18, v23, 4, s83")
    a("s_lshl_b32 s83, s3, 5\nv_lshl_add_u32 v19, v12, 2, s83")
    a("s_lshl_b32 s83, s3, 11\nv_lshl_add_u32 v21, v15, 10, v14\nv_add_u32 v21, s83, v21\n" + f"v_add_u32 v21, {L_AB}, v21")
    a("v_and_b32 v25, 15, v1\nv_lshlrev_b32 v22, 7, v25\nv_lshl_add_u32 v22, v24, 4, v22\ns_lshl_b32 s83, s3, 2\nv_add_u32 v22, s83, v22")
    a("v_lshlrev_b32 v26, 3, v19")
    a("s_waitcnt lgkmcnt(0)\ns_barrier")
    stamp()
    for w in range(8):
        a(f"ds_read_b64 v[{128+2*w}:{129+2*w}], v16 offset:{L_O + 4096*w}")
    a(f"ds_read_b128 v[144:147], v18 offset:{L_W}\nds_read_b128 v[148:151], v18 offset:{L_W + 64}\nds_read_b32 v152, v19 offset:{L_H}")
    a("s_waitcnt lgkmcnt(0)")
    for w in range(4): a(f"v_pk_add_f32 v[{128+2*w}:{129+2*w}], v[{128+2*w}:{129+2*w}], v[{136+2*w}:{137+2*w}]")
    a("v_pk_add_f32 v[128:129], v[128:129], v[132:133]\nv_pk_add_f32 v[130:131], v[130:131], v[134:135]\nv_pk_add_f32 v[128:129], v[128:129], v[130:131]")
    a(f"buffer_store_dwordx2 v[128:129], v8, {WS}, 0 offen sc1", 'op')
    a(f"buffer_load_dwordx4 v[160:163], v17, {WS}, s24 offen sc1", 'h3')
    a(f"buffer_load_dwordx4 v[164:167], v17, {WS}, s24 offen offset:1024 sc1", 'h3')
    afrag(152)
    a.wait_vm('wd')
    for cb in range(4):
        a(f"v_mfma_f32_16x16x32_bf16 v[{80+4*cb}:{83+4*cb}], v[28:31], v[{112+4*cb}:{115+4*cb}], 0")
    a("s_mov_b64 exec, s[80:81]")
    for cb in range(4):
        a(f"ds_write_b128 v21, v[{80+4*cb}:{83+4*cb}] offset:{16384 + 256*cb}")
    a(f"s_mov_b64 exec, -1\ns_mov_b32 s82, {SPIN}")
    a.label("L_h3poll")
    a("s_waitcnt vmcnt(0)")
    for i in range(4): a(f"v_mul_f32 v{168+i}, v{160+i}, v{144+i}")
    for i in range(4): a(f"v_fmac_f32 v{168+i}, v{164+i}, v{148+i}")
    a("v_cmp_u_f32 vcc, v168, v169\nv_cmp_u_f32 s[26:27], v170, v171\ns_or_b64 vcc, vcc, s[26:27]\ns_cbranch_scc0 L_h3done")
    a("s_sub_u32 s82, s82, 1\ns_cbranch_scc1 L_h3done\ns_mov_b64 exec, vcc")
    a(f"buffer_load_dwordx4 v[160:163], v17, {WS}, s24 offen sc1", False)
    a(f"buffer_load_dwordx4 v[164:167], v17, {WS}, s24 offen offset:1024 sc1", False)
    a("s_branch L_h3poll")
    a.label("L_h3done")
    a("s_mov_b64 exec, -1")
    stamp()
    treduce4(168)
    a(f"ds_write_b32 v22, v168 offset:{L_C}\ns_waitcnt lgkmcnt(0)\ns_barrier")
    a(f"ds_read_b128 v[128:131], v26 offset:{L_C}\nds_read_b128 v[132:135], v26 offset:{L_C + 16}\ns_waitcnt lgkmcnt(0)")
    a("v_pk_add_f32 v[128:129], v[128:129], v[132:133]\nv_pk_add_f32 v[130:131], v[130:131], v[134:135]\nv_pk_add_f32 v[128:129], v[128:129], v[130:131]\nv_add_f32 v128, v128, v129")
    a("v_cvt_pk_bf16_f32 v128, v128, v128")
    afrag(128)
    for cb in range(4):
        a(f"v_mfma_f32_16x16x32_bf16 v[{80+4*cb}:{83+4*cb}], v[28:31], v[{32+4*cb}:{35+4*cb}], 0")
    a(f"v_lshrrev_b32 v25, 8, v0\nv_lshlrev_b32 v25, 14, v25\nv_and_b32 v16, 255, v0\nv_lshl_add_u32 v25, v16, 2, v25\nv_add_u32 v25, {L_AB}, v25")
    a("s_mov_b64 exec, s[80:81]")
    for cb in range(4):
        a(f"ds_write_b128 v21, v[{80+4*cb}:{83+4*cb}] offset:{256*cb}")
    a("s_mov_b64 exec, -1\ns_waitcnt lgkmcnt(0)\ns_barrier")
    for k in range(8):
        a(f"ds_read2st64_b32 v[{128+2*k}:{129+2*k}], v25 offset0:{8*k} offset1:{8*k+4}")
    a("s_waitcnt lgkmcnt(0)")
    for w in range(4): a(f"v_pk_add_f32 v[{128+2*w}:{129+2*w}], v[{128+2*w}:{129+2*w}], v[{136+2*w}:{137+2*w}]")
    a("v_pk_add_f32 v[128:129], v[128:129], v[132:133]\nv_pk_add_f32 v[130:131], v[130:131], v[134:135]\nv_pk_add_f32 v[128:129], v[128:129], v[130:131]\nv_add_f32 v128, v128, v129")
    a(f"buffer_store_dword v128, v9, {WS}, 0 offen sc1", 'ab')
    stamp()
    a("s_cmp_lg_u32 s3, 0\ns_cbranch_scc1 L_fin")
    a(f"s_lshr_b32 s83, s84, 6\ns_lshl_b32 s83, s83, 17\ns_and_b32 s82, s84, 63\ns_lshl_b32 s82, s82, 4\ns_add_u32 s83, s83, s82\ns_add_u32 s83, s83, {AB}")
    a(f"v_lshlrev_b32 v17, 11, v1\ns_mov_b32 s82, {SPIN}")
    a.label("L_h4poll")
    a(f"buffer_load_dwordx4 v[160:163], v17, {WS}, s83 offen sc1", False)
    a(f"buffer_load_dwordx4 v[164:167], v17, {WS}, s83 offen offset:1024 sc1", False)
    a("s_waitcnt vmcnt(0)")
    a("v_add_f32 v168, v160, v161\nv_add_f32 v169, v162, v163\nv_add_f32 v170, v164, v165\nv_add_f32 v171, v166, v167")
    a("v_cmp_u_f32 vcc, v168, v169\nv_cmp_u_f32 s[26:27], v170, v171\ns_or_b64 vcc, vcc, s[26:27]\ns_cbranch_scc0 L_h4done")
    a("s_sub_u32 s82, s82, 1\ns_cbranch_scc1 L_h4done\ns_mov_b64 exec, vcc\ns_branch L_h4poll")
    a.label("L_h4done")
    a("s_mov_b64 exec, -1")
    treduce4(160); treduce4(164)
    for s in (8, 4, 2, 1):
        a(f"v_add_f32_dpp v160, v160, v160 row_ror:{s} row_mask:0xf bank_mask:0xf\nv_add_f32_dpp v164, v164, v164 row_ror:{s} row_mask:0xf bank_mask:0xf")
    a("v_cvt_pk_bf16_f32 v160, v160, v164\nv_lshlrev_b32 v27, 16, v27\nv_and_b32 v164, 0xffff0000, v160\nv_lshlrev_b32 v160, 16, v160")
    a("v_add_f32 v160, v27, v160\nv_cvt_pk_bf16_f32 v160, v160, v160\nv_and_b32 v160, 0xffff0000, v160\nv_add_f32 v160, v160, v164\nv_cvt_pk_bf16_f32 v160, v160, v160")
    a("s_mov_b32 s26, 0x00010001\ns_mov_b32 s27, 0x00010001\ns_mov_b64 exec, s[26:27]")
    a(f"buffer_store_short v160, v24, {OUT}, s85 offen", False)
    a("s_mov_b64 exec, -1")
    a.label("L_fin")
    if stamps:
        stamp()
        n = nst[0]
        a("s_load_dwordx2 s[26:27], s[0:1], 88\ns_waitcnt vmcnt(0) lgkmcnt(0)")
        a(f"s_lshl_b32 s83, s2, 3\ns_add_u32 s83, s83, s3\ns_mul_i32 s83, s83, {8*n}\ns_add_u32 s83, s83, 0x8000000\ns_add_u32 s26, s26, s83\ns_addc_u32 s27, s27, 0")
        a("v_mov_b32 v7, 0\ns_mov_b64 exec, 1")
        for i in range(n):
            r = stampregs[i]
            a(f"v_mov_b32 v8, s{r}\nv_mov_b32 v9, s{r+1}\nglobal_store_dwordx2 v7, v[8:9], s[26:27] offset:{8*i}\ns_nop 1")
        print("stamps:", n, file=sys.stderr)
    a.label("L_end")
    a("s_endpgm")
    a.raw('.section .rodata,"a"\n.p2align 6\n' + f".amdhsa_kernel {NAME}_kernel")
    a.raw("  .amdhsa_next_free_vgpr 256\n  .amdhsa_next_free_sgpr 102\n  .amdhsa_accum_offset 256\n  .amdhsa_group_segment_fixed_size 0\n  .amdhsa_kernarg_size 96")
    a.raw("  .amdhsa_user_sgpr_count 2\n  .amdhsa_user_sgpr_kernarg_segment_ptr 1\n  .amdhsa_system_sgpr_workgroup_id_x 1\n.end_amdhsa_kernel")
    return a.text()

if __name__ == "__main__":
    open("k1.s", "w").write(gen())
    open("k1_st.s", "w").write(gen(stamps=True))
    open("k1_plain.s", "w").write(gen(nt=""))
```

```python
import sys
from asmlib import Asm
NAME = "parallel_sum__gqa_block_cached__swiglu_ffn__decode"
HDR = open("cdna_kernels/" + NAME + ".s.ref").read().split("; Override launch")[0]

QP, ML, AB, OP, GU, WSN = 0x0, 0x10000, 0x20000, 0x100000, 0x200000, 0x300000
OOB = 0x40000000
L_QP, L_GU, L_Q, L_ML, L_W, L_H, L_C, L_O, L_AB, L_END = 0, 4096, 32768, 34816, 35328, 36352, 36608, 0, 40960, 73728
X, K, V, WQ, WGU, WO, WD, WS, DBG, OUT = [f"s[{b}:{b+3}]" for b in range(28, 68, 4)]
SPIN = 20000

def gen(stamps=False, nt=" nt", debug=False):
    a = Asm()
    nst = [0]
    stampregs = [86, 88, 90, 92, 94, 96, 98, 100, 4, 6, 8, 10, 12, 14, 16, 18]
    def stamp():
        if stamps:
            r = stampregs[nst[0]]; nst[0] += 1
            a(f"s_memrealtime s[{r}:{r+1}]")
    def srd(b, lo, n):
        a(f"s_mov_b32 s{b}, s{lo}\ns_mov_b32 s{b+1}, s{lo+1}\ns_mov_b32 s{b+2}, {n}\ns_mov_b32 s{b+3}, 0x20000")
    def allreduce_rows(v, t, op):
        a(f"v_mov_b32 v{t}, v{v}\nv_permlane32_swap_b32 v{v}, v{t}\n{op} v{v}, v{v}, v{t}")
        a(f"v_mov_b32 v{t}, v{v}\nv_permlane16_swap_b32 v{v}, v{t}\n{op} v{v}, v{v}, v{t}")
    def allreduce_inrow(v, op, steps=(8, 4, 2, 1)):
        for s in steps:
            a(f"{op}_dpp v{v}, v{v}, v{v} row_ror:{s} row_mask:0xf bank_mask:0xf")
    def treduce4(r):
        a(f"v_permlane32_swap_b32 v{r}, v{r+1}\nv_permlane32_swap_b32 v{r+2}, v{r+3}")
        a(f"v_add_f32 v{r}, v{r}, v{r+1}\nv_add_f32 v{r+2}, v{r+2}, v{r+3}")
        a(f"v_permlane16_swap_b32 v{r}, v{r+2}\nv_add_f32 v{r}, v{r}, v{r+2}")
    def afrag(xx):
        for d in range(4):
            a(f"v_and_b32 v{28+d}, v{xx}, v{2+d}")

    a.raw(HDR + f"; @launch grid=(256,1,1) block=(512,1,1) lds={L_END}")
    a.raw('.amdgcn_target "amdgcn-amd-amdhsa--gfx950"\n.text\n' + f".globl {NAME}_kernel\n.p2align 8\n.type {NAME}_kernel,@function\n{NAME}_kernel:")
    stamp()
    if debug: a("s_memrealtime s[86:87]")
    a("s_cmp_ge_u32 s2, 256\ns_cbranch_scc1 L_end")
    a("s_load_dwordx16 s[4:19], s[0:1], 0\ns_load_dwordx8 s[20:27], s[0:1], 64")
    a("v_lshrrev_b32 v12, 6, v0\nv_and_b32 v1, 63, v0\nv_readfirstlane_b32 s3, v12")
    a("v_lshrrev_b32 v12, 3, v1\nv_and_b32 v13, 7, v1")
    a("v_lshlrev_b32 v14, 5, v1")
    a("v_lshlrev_b32 v15, 1, v12")
    a("v_lshlrev_b32 v20, 4, v13")
    a("v_lshl_add_u32 v21, v12, 13, v20")
    a("s_movk_i32 s83, 7168\nv_mad_u32_u24 v22, v12, s83, v20")
    a("s_lshr_b32 s68, s2, 6")
    a("s_and_b32 s69, s2, 63")
    a("s_bfe_u32 s70, s2, 0x20004")
    a("s_lshl_b32 s70, s70, 3\ns_add_u32 s70, s70, s3\ns_lshl_b32 s70, s70, 5")
    a("s_lshl_b32 s71, s70, 1")
    a("s_lshl_b32 s72, s70, 13")
    a("s_lshl_b32 s73, s68, 11\ns_add_u32 s72, s72, s73")
    a("s_and_b32 s73, s2, 15\ns_lshl_b32 s73, s73, 7\ns_add_u32 s72, s72, s73")
    a("s_lshr_b32 s73, s2, 3\ns_lshl_b32 s73, s73, 2\ns_lshr_b32 s74, s3, 1\ns_add_u32 s73, s73, s74\ns_lshl_b32 s73, s73, 3")
    a("s_lshl_b32 s74, s73, 1")
    a("s_mul_i32 s75, s73, 7168\ns_and_b32 s83, s2, 7\ns_mul_i32 s83, s83, 896\ns_add_u32 s75, s75, s83")
    a("s_and_b32 s84, s2, 7\ns_lshl_b32 s84, s84, 5\ns_lshr_b32 s83, s2, 3\ns_add_u32 s84, s84, s83")
    a("s_lshl_b32 s85, s84, 3")
    a("v_lshrrev_b32 v23, 4, v1\nv_and_b32 v24, 1, v23\nv_lshrrev_b32 v25, 1, v23\nv_lshl_or_b32 v24, v24, 1, v25\nv_lshlrev_b32 v24, 1, v24")
    a("s_waitcnt lgkmcnt(0)")
    srd(28, 4, 2048); srd(40, 10, 8388608)
    a(f"buffer_load_dwordx4 v[104:107], v14, {X}, 0 offen", 'x')
    a(f"buffer_load_dwordx4 v[108:111], v14, {X}, 0 offen offset:16", 'x')
    for u in range(4):
        a(f"buffer_load_ushort v{96+u}, v15, {X}, s71 offen offset:{16*u}", 'x')
    a(f"buffer_load_ushort v100, v15, {X}, s74 offen", 'x')
    a(f"buffer_load_ushort v27, v24, {X}, s85 offen", 'x')
    for u in range(4):
        a(f"buffer_load_dwordx4 v[{32+4*u}:{35+4*u}], v21, {WQ}, s72 offen{nt}", 'wq')
        if u < 3: a("s_add_u32 s72, s72, 0x10000")
    srd(56, 26, WSN)
    a("v_mov_b32 v16, -1\nv_mov_b32 v17, -1\nv_mov_b32 v18, -1\nv_mov_b32 v19, -1")
    a(f"s_lshl_b32 s83, s68, 18\ns_lshl_b32 s82, s69, 8\ns_add_u32 s83, s83, s82\ns_add_u32 s83, s83, {OP}")
    a("v_lshrrev_b32 v8, 5, v0\nv_lshlrev_b32 v8, 14, v8\nv_and_b32 v9, 31, v0\nv_lshl_add_u32 v8, v9, 3, v8\nv_add_u32 v8, s83, v8")
    a(f"s_lshl_b32 s83, s2, 11\ns_add_u32 s83, s83, {AB}\nv_lshl_add_u32 v9, v0, 2, s83")
    a("s_lshr_b32 s83, s2, 3\ns_lshl_b32 s83, s83, 1\ns_lshr_b32 s82, s3, 2\ns_add_u32 s83, s83, s82\ns_mul_i32 s83, s83, 14336")
    a("s_and_b32 s82, s2, 7\ns_mul_i32 s82, s82, 1792\ns_add_u32 s83, s83, s82\ns_and_b32 s82, s3, 3\ns_mul_i32 s82, s82, 448\ns_add_u32 s83, s83, s82")
    a(f"s_add_u32 s83, s83, {GU}\nv_lshl_add_u32 v10, v1, 4, s83\nv_mov_b32 v26, {OOB}\nv_cmp_gt_u32 vcc, 28, v1\nv_cndmask_b32 v10, v26, v10, vcc")
    a(f"s_lshl_b32 s83, s68, 12\ns_lshl_b32 s82, s69, 5\ns_add_u32 s83, s83, s82\ns_add_u32 s83, s83, {ML}")
    a("v_lshrrev_b32 v11, 2, v0\nv_lshlrev_b32 v11, 11, v11\nv_and_b32 v25, 3, v0\nv_lshl_add_u32 v11, v25, 2, v11\nv_add_u32 v11, s83, v11")
    a("v_cmp_gt_u32 vcc, 8, v0\nv_cndmask_b32 v11, v26, v11, vcc")
    a(f"buffer_store_dwordx2 v[16:17], v8, {WS}, 0 offen sc1", 'clr')
    a(f"buffer_store_dword v16, v9, {WS}, 0 offen sc1", 'clr')
    a(f"buffer_store_dwordx4 v[16:19], v10, {WS}, 0 offen sc1", 'clr')
    a(f"buffer_store_dword v16, v11, {WS}, 0 offen sc1", 'clr')
    a(f"buffer_store_dword v16, v11, {WS}, 0 offen offset:16 sc1", 'clr')
    a("s_bitcmp1_b32 s3, 0\ns_cselect_b32 s44, s18, s16\ns_cselect_b32 s45, s19, s17\ns_mov_b32 s46, 7340032\ns_mov_b32 s47, 0x20000")
    for u in range(7):
        a(f"buffer_load_dwordx4 v[{48+4*u}:{51+4*u}], v22, {WGU}, s75 offen offset:{128*u}{nt}", 'wgu')
    a("s_getpc_b64 s[82:83]")
    a.label("L_pc")
    a("v_lshlrev_b32 v25, 5, v0\nv_min_u32 v25, L_end-L_pc-4, v25")
    a("global_load_dword v112, v25, s[82:83]", 'pf')
    srd(32, 6, 0x4000000); srd(36, 8, 0x4000000); srd(48, 12, 8388608); srd(52, 20, 7340032); srd(60, 24, 256); srd(64, 22, 2048)
    a("s_mov_b32 s76, 0x3db504f3\ns_mov_b32 s77, 0x3fb8aa3b\ns_mov_b32 s78, 0x05040100\ns_mov_b32 s79, 0x07060302")
    a("s_mov_b32 s80, 0x00ff00ff\ns_mov_b32 s81, 0xff00ff00")
    a("v_and_b32 v25, 1, v1\nv_cmp_eq_u32 vcc, 1, v25\nv_mov_b32 v25, 0xffff\nv_mov_b32 v26, 0xffff0000\nv_cndmask_b32 v25, v25, v26, vcc\nv_lshrrev_b32 v26, 1, v13")
    for d in range(4):
        a(f"v_cmp_eq_u32 vcc, {d}, v26\nv_cndmask_b32 v{2+d}, 0, v25, vcc")
    a("v_and_b32 v25, 15, v1\nv_lshlrev_b32 v6, 8, v25\nv_lshl_add_u32 v6, v23, 4, v6\nv_lshlrev_b32 v7, 4, v25\nv_lshl_add_u32 v7, v23, 10, v7")
    a("s_mov_b32 s22, s69\ns_mov_b32 s23, s68")
    a("s_lshr_b32 s20, s22, 3\ns_lshl_b32 s20, s20, 9\ns_lshl_b32 s83, s3, 4\ns_add_u32 s20, s20, s83\ns_and_b32 s83, s22, 7\ns_add_u32 s20, s20, s83\ns_lshl_b32 s20, s20, 11\ns_lshl_b32 s83, s23, 9\ns_add_u32 s20, s20, s83")
    a("s_mul_i32 s21, s22, 56\ns_lshl_b32 s82, s3, 3\ns_add_u32 s21, s21, s82\ns_lshl_b32 s21, s21, 11\ns_add_u32 s21, s21, s83\ns_cmp_eq_u32 s3, 7\ns_cselect_b32 s21, 7340032, s21")
    a("s_lshl_b32 s68, s23, 24\ns_lshl_b32 s83, s22, 3\ns_add_u32 s83, s83, s3\ns_lshl_b32 s83, s83, 12\ns_add_u32 s68, s68, s83")
    for t in range(1, 8):
        a(f"s_add_u32 s{68+t}, s68, {t << 21}")
    a(f"v_lshlrev_b32 v25, 3, v1\nds_write_b64 v25, v[16:17] offset:{L_ML}")
    a("v_and_b32 v25, 1, v23\nv_lshlrev_b32 v25, 4, v25\nv_lshl_add_u32 v14, v13, 5, v25")
    a("v_lshrrev_b32 v15, 5, v1")
    a.wait_vm('x')
    stamp()
    for i in range(8):
        a(f"v_lshlrev_b32 v{112+2*i}, 16, v{104+i}\nv_and_b32 v{113+2*i}, 0xffff0000, v{104+i}") if False else None
    for i in range(8):
        a(f"v_lshlrev_b32 v{76+2*i}, 16, v{104+i}\nv_and_b32 v{77+2*i}, 0xffff0000, v{104+i}")
    a("v_add_f32 v92, v76, v77")
    for i in range(2, 16): a(f"v_add_f32 v92, v92, v{76+i}")
    allreduce_inrow(92, "v_add_f32"); allreduce_rows(92, 93, "v_add_f32")
    a("v_mul_f32 v92, 0x3a800000, v92")
    for i in range(16): a(f"v_sub_f32 v{76+i}, v{76+i}, v92")
    a("v_mul_f32 v94, v76, v76")
    for i in range(1, 16): a(f"v_fmac_f32 v94, v{76+i}, v{76+i}")
    allreduce_inrow(94, "v_add_f32"); allreduce_rows(94, 93, "v_add_f32")
    a("v_mul_f32 v94, 0x3a800000, v94\nv_cvt_pk_bf16_f32 v94, v94, v92")
    a("v_and_b32 v92, 0xffff0000, v94\nv_lshlrev_b32 v94, 16, v94")
    a("v_add_f32 v94, 0x3727c5ac, v94\nv_cvt_pk_bf16_f32 v94, v94, v94\nv_and_b32 v94, 0xffff0000, v94")
    a("v_sqrt_f32 v94, v94\nv_cvt_pk_bf16_f32 v94, v94, v94\nv_and_b32 v94, 0xffff0000, v94\nv_rcp_f32 v95, v94")
    for i in range(5):
        r = 96 + i
        a(f"v_lshlrev_b32 v{r}, 16, v{r}\nv_sub_f32 v{r}, v{r}, v92\nv_cvt_pk_bf16_f32 v{r}, v{r}, v{r}\nv_and_b32 v{r}, 0xffff0000, v{r}")
        a(f"v_mul_f32 v76, v{r}, v95\nv_fma_f32 v77, -v76, v94, v{r}\nv_fma_f32 v76, v77, v95, v76\nv_cvt_pk_bf16_f32 v{r}, v76, v76")
    a.wait_vm('clr')
    for u in range(4):
        afrag(96 + u)
        a(f"v_mfma_f32_16x16x32_bf16 v[76:79], v[28:31], v[{32+4*u}:{35+4*u}], {'0' if u == 0 else 'v[76:79]'}")
    a("s_lshl_b32 s83, s3, 9\nv_lshl_add_u32 v25, v15, 8, v14\nv_add_u32 v25, s83, v25")
    a(f"s_mov_b64 exec, s[80:81]\nds_write_b128 v25, v[76:79] offset:{L_QP}\ns_mov_b64 exec, -1")
    a("s_waitcnt lgkmcnt(0)\ns_barrier")
    stamp()
    a("s_cmp_lg_u32 s3, 0\ns_cbranch_scc1 L_noqpub")
    a("v_lshlrev_b32 v25, 2, v1")
    for k in range(8):
        a(f"ds_read2st64_b32 v[{76+2*k}:{77+2*k}], v25 offset0:{(L_QP>>8)+2*k} offset1:{(L_QP>>8)+2*k+1}")
    a("s_lshr_b32 s83, s2, 4\ns_lshl_b32 s83, s83, 12\ns_and_b32 s82, s2, 15\ns_lshl_b32 s82, s82, 8\ns_add_u32 s83, s83, s82")
    a("s_waitcnt lgkmcnt(0)")
    for k in range(1, 16): a(f"v_add_f32 v76, v76, v{76+k}")
    a(f"buffer_store_dword v76, v25, {WS}, s83 offen sc1", False)
    a("v_mov_b32 v77, 1\nv_mov_b32 v78, 0\ns_waitcnt vmcnt(0)\ns_mov_b64 exec, 1")
    a(f"buffer_store_byte v77, v78, {DBG}, s2 offen sc1", False)
    a("s_mov_b64 exec, -1")
    a.label("L_noqpub")
    def kload(t):
        for j in range(4):
            r = 128 + 16*t + 4*j
            a(f"buffer_load_dwordx4 v[{r}:{r+3}], v6, {K}, s{68+t} offen offset:{64*j}{nt}", f'k{t}')
    def vload(t):
        for j in range(4):
            r = 128 + 16*t + 4*j
            a(f"buffer_load_dwordx4 v[{r}:{r+3}], v7, {V}, s{68+t} offen offset:{256*j}{nt}", f'v{t}')
    kload(0); kload(1)
    afrag(100)
    a.wait_vm('wgu')
    for u in range(7):
        a(f"v_mfma_f32_16x16x32_bf16 v[{76+4*u}:{79+4*u}], v[28:31], v[{48+4*u}:{51+4*u}], 0")
    a("s_and_b32 s83, s3, 1\ns_lshl_b32 s83, s83, 3\ns_and_b32 s82, s3, 6\ns_add_u32 s83, s83, s82\nv_add_u32 v25, s83, v15\ns_movk_i32 s83, 1792\nv_mad_u32_u24 v25, v25, s83, v14")
    a("s_mov_b64 exec, s[80:81]")
    for u in range(7):
        a(f"ds_write_b128 v25, v[{76+4*u}:{79+4*u}] offset:{L_GU + 256*u}")
    a("s_mov_b64 exec, -1")
    a("s_cmp_lg_u32 s3, 0\ns_cbranch_scc1 L_noq")
    a(f"v_lshlrev_b32 v25, 2, v1\ns_mov_b32 s82, {SPIN}\ns_mov_b32 s83, 0x01010101")
    a.label("L_flagpoll")
    a(f"buffer_load_dword v26, v25, {DBG}, 0 offen sc1", False)
    a("s_sub_u32 s82, s82, 1\ns_cbranch_scc1 L_flagdone\ns_waitcnt vmcnt(0)\nv_cmp_ne_u32 vcc, s83, v26\ns_cbranch_vccz L_flagdone\ns_sleep 2\ns_branch L_flagpoll")
    a.label("L_flagdone")
    stamp()
    a("v_lshlrev_b32 v25, 4, v1\ns_lshl_b32 s83, s23, 14")
    for ks in range(4):
        for qd in range(4):
            r = 192 + 16*ks + 4*qd
            a(f"buffer_load_dwordx4 v[{r}:{r+3}], v25, {WS}, s83 offen offset:{1024*qd} sc1", False)
        if ks < 3: a("s_add_u32 s83, s83, 4096")
    a("v_lshlrev_b32 v25, 3, v1\ns_waitcnt vmcnt(0)")
    for i in range(16):
        a(f"v_add_f32 v{192+i}, v{192+i}, v{208+i}\nv_add_f32 v{224+i}, v{224+i}, v{240+i}")
    for i in range(16):
        a(f"v_add_f32 v{192+i}, v{192+i}, v{224+i}")
    for i in range(8):
        a(f"v_cvt_pk_bf16_f32 v{208+i}, v{192+2*i}, v{193+2*i}")
    for qd in range(4):
        a(f"ds_write_b64 v25, v[{208+2*qd}:{209+2*qd}] offset:{L_Q + 512*qd}")
    a("s_waitcnt lgkmcnt(0)")
    if stamps:
        a("s_branch L_noq2")
    a.label("L_noq")
    if stamps:
        nst[0] -= 1; stamp()
        a.label("L_noq2")
    stamp()
    for t in range(2, 8): kload(t)
    a("s_waitcnt lgkmcnt(0)\ns_barrier")
    stamp()
    a("v_lshlrev_b32 v25, 8, v13\nv_lshl_add_u32 v25, v23, 4, v25")
    for j in range(4):
        a(f"ds_read_b128 v[{32+4*j}:{35+4*j}], v25 offset:{L_Q + 64*j}")
    a("s_lshr_b32 s83, s3, 2\ns_mul_i32 s83, s83, 14336\ns_and_b32 s82, s3, 3\ns_mul_i32 s82, s82, 448\ns_add_u32 s83, s83, s82")
    a("v_min_u32 v26, 27, v1\nv_lshl_add_u32 v26, v26, 4, s83")
    for k in range(8):
        a(f"ds_read_b128 v[{80+4*k}:{83+4*k}], v26 offset:{L_GU + 1792*k}")
    a("s_waitcnt lgkmcnt(0)")
    for k in range(1, 8):
        for i in range(4): a(f"v_add_f32 v{80+i}, v{80+i}, v{80+4*k+i}")
    a(f"buffer_store_dwordx4 v[80:83], v10, {WS}, 0 offen sc1", 'gu')
    for t in range(8):
        a.wait_vm(f'k{t}')
        for j in range(4):
            r = 128 + 16*t + 4*j
            a(f"v_mfma_f32_16x16x32_bf16 v[{48+4*t}:{51+4*t}], v[{r}:{r+3}], v[{32+4*j}:{35+4*j}], {'0' if j == 0 else f'v[{48+4*t}:{51+4*t}]'}")
    stamp()
    vload(0); vload(1)
    for k in range(16):
        r = 48 + 2*k
        a(f"v_cvt_pk_bf16_f32 v25, v{r}, v{r+1}\nv_lshlrev_b32 v{r}, 16, v25\nv_and_b32 v{r+1}, 0xffff0000, v25")
        a(f"v_mul_f32 v{r}, s76, v{r}\nv_mul_f32 v{r+1}, s76, v{r+1}")
        a(f"v_cvt_pk_bf16_f32 v25, v{r}, v{r+1}\nv_lshlrev_b32 v{r}, 16, v25\nv_and_b32 v{r+1}, 0xffff0000, v25")
        if k == 0: a(f"v_max_f32 v16, v{r}, v{r+1}")
        else: a(f"v_max3_f32 v16, v16, v{r}, v{r+1}")
    allreduce_rows(16, 25, "v_max_f32")
    a("v_mul_f32 v18, s77, v16")
    for k in range(32):
        a(f"v_fma_f32 v{80+k}, v{48+k}, s77, -v18")
    for k in range(32):
        a(f"v_exp_f32 v{80+k}, v{80+k}")
    for k in range(16): a(f"v_add_f32 v{80+k}, v{80+k}, v{96+k}")
    for k in range(8): a(f"v_add_f32 v{80+k}, v{80+k}, v{88+k}")
    for k in range(4): a(f"v_add_f32 v{80+k}, v{80+k}, v{84+k}")
    a("v_add_f32 v80, v80, v81\nv_add_f32 v82, v82, v83\nv_add_f32 v17, v80, v82")
    allreduce_rows(17, 25, "v_add_f32")
    a(f"s_lshl_b32 s83, s3, 6\nv_lshl_add_u32 v25, v13, 3, s83\nds_write_b64 v25, v[16:17] offset:{L_ML}")
    for t in range(2, 8): vload(t)
    a("v_lshl_add_u32 v21, v12, 11, v20")
    for cb in range(4):
        a(f"buffer_load_dwordx4 v[{112+4*cb}:{115+4*cb}], v21, {WD}, s21 offen offset:{128*cb}{nt}", 'wd')
    a("v_and_b32 v22, 3, v12\nv_lshlrev_b32 v22, 4, v22\nv_add_u32 v22, v22, v15\nv_lshl_add_u32 v22, v22, 14, v20")
    for cb in range(4):
        a(f"buffer_load_dwordx4 v[{32+4*cb}:{35+4*cb}], v22, {WO}, s20 offen offset:{128*cb}{nt}", 'wo')
    stamp()
    a(f"v_lshlrev_b32 v25, 3, v1\ns_mov_b32 s82, {SPIN*8}")
    a.label("L_mlspin")
    a(f"ds_read_b64 v[16:17], v25 offset:{L_ML}\ns_sub_u32 s82, s82, 1\ns_cbranch_scc1 L_mldone\ns_waitcnt lgkmcnt(0)\nv_cmp_u_f32 vcc, v16, v17\ns_cbranch_vccz L_mldone\ns_sleep 1\ns_branch L_mlspin")
    a.label("L_mldone")
    a("s_waitcnt lgkmcnt(0)\nv_mov_b32 v18, v16")
    allreduce_inrow(18, "v_max_f32", (8,)); allreduce_rows(18, 25, "v_max_f32")
    a("s_cmp_lg_u32 s3, 0\ns_cbranch_scc1 L_nomlpub")
    a("v_sub_f32 v16, v16, v18\nv_mul_f32 v16, s77, v16\nv_exp_f32 v16, v16\nv_mul_f32 v17, v16, v17")
    allreduce_inrow(17, "v_add_f32", (8,)); allreduce_rows(17, 25, "v_add_f32")
    a(f"buffer_store_dword v18, v11, {WS}, 0 offen sc1", False)
    a(f"buffer_store_dword v17, v11, {WS}, 0 offen offset:16 sc1", False)
    a.label("L_nomlpub")
    a("v_mul_f32 v19, s77, v18")
    for k in range(32): a(f"v_fma_f32 v{48+k}, v{48+k}, s77, -v19")
    for k in range(32): a(f"v_exp_f32 v{48+k}, v{48+k}")
    for k in range(16): a(f"v_cvt_pk_bf16_f32 v{48+k}, v{48+2*k}, v{49+2*k}")
    for b in range(4):
        a.wait_vm(f'v{2*b+1}')
        for e in range(8):
            tmp = 64 + 4*(e & 3)
            for jj in range(4):
                lo = 128 + 32*b + 8*jj + (e >> 1); hi = lo + 4
                a(f"v_perm_b32 v{tmp+jj}, v{hi}, v{lo}, s{78 + (e & 1)}")
            a(f"v_mfma_f32_16x16x32_bf16 v[{80+4*e}:{83+4*e}], v[{48+4*b}:{51+4*b}], v[{tmp}:{tmp+3}], {'0' if b == 0 else f'v[{80+4*e}:{83+4*e}]'}")
    stamp()
    a("s_lshl_b32 s83, s3, 12\nv_and_b32 v25, 15, v1\nv_lshlrev_b32 v25, 4, v25\nv_lshl_add_u32 v25, v23, 11, v25\nv_add_u32 v25, s83, v25")
    a("s_mov_b32 exec_hi, 0")
    for e in range(8):
        a(f"ds_write_b128 v25, v[{80+4*e}:{83+4*e}] offset:{L_O + 256*e}")
    a("s_mov_b64 exec, -1")
    a("s_cmp_lg_u32 s3, 0\ns_cbranch_scc1 L_nomgr")
    a(f"v_and_b32 v25, 15, v1\ns_movk_i32 s83, 28672\nv_mul_u32_u24 v26, s83, v23\nv_lshl_add_u32 v26, v25, 4, v26\nv_cmp_gt_u32 vcc, 14, v25\nv_mov_b32 v25, {OOB}\nv_cndmask_b32 v26, v25, v26, vcc")
    a(f"s_mov_b32 s82, {SPIN}")
    a.label("L_hpoll")
    a(f"s_mul_i32 s83, s22, 224\ns_add_u32 s83, s83, {GU}")
    for kk in range(8):
        for mat in range(2):
            r = 128 + 32*mat + 4*kk
            a(f"buffer_load_dwordx4 v[{r}:{r+3}], v26, {WS}, s83 offen sc1", False)
            a(f"s_add_u32 s83, s83, {14336 if mat == 0 else 114688 - 14336}")
    a("s_waitcnt vmcnt(0)")
    for mat in range(2):
        for kk in range(1, 8):
            for i in range(4): a(f"v_add_f32 v{128+32*mat+i}, v{128+32*mat+i}, v{128+32*mat+4*kk+i}")
    treduce4(128); treduce4(160)
    a("s_sub_u32 s82, s82, 1\ns_cbranch_scc1 L_hdone\nv_cmp_u_f32 vcc, v128, v160\ns_cbranch_vccz L_hdone\ns_sleep 2\ns_branch L_hpoll")
    a.label("L_hdone")
    a("v_cvt_pk_bf16_f32 v128, v128, v160\nv_and_b32 v160, 0xffff0000, v128\nv_lshlrev_b32 v128, 16, v128")
    a("v_mul_f32 v129, s77, v128\nv_exp_f32 v129, -v129\nv_add_f32 v129, 1.0, v129\nv_rcp_f32 v129, v129\nv_mul_f32 v128, v128, v129")
    a("v_cvt_pk_bf16_f32 v128, v128, v128\nv_and_b32 v128, 0xffff0000, v128\nv_mul_f32 v128, v128, v160\nv_cvt_pk_bf16_f32 v128, v128, v128")
    a(f"v_and_b32 v25, 15, v1\nv_lshlrev_b32 v25, 4, v25\nv_lshl_add_u32 v25, v24, 1, v25\nds_write_b32 v25, v128 offset:{L_H}")
    a(f"s_lshr_b32 s83, s22, 3\ns_lshl_b32 s83, s83, 11\ns_add_u32 s83, s83, {ML}\nv_lshlrev_b32 v26, 5, v1\ns_mov_b32 s82, {SPIN}")
    a.label("L_wpoll")
    a(f"buffer_load_dwordx4 v[128:131], v26, {WS}, s83 offen sc1", False)
    a(f"buffer_load_dwordx4 v[132:135], v26, {WS}, s83 offen offset:16 sc1", False)
    a("s_waitcnt vmcnt(0)")
    for i in range(4): a(f"v_mov_b32 v{136+i}, v{128+i}")
    for s in (8, 4, 2, 1):
        for i in range(4): a(f"v_max_f32_dpp v{136+i}, v{136+i}, v{136+i} row_ror:{s} row_mask:0xf bank_mask:0xf")
    for i in range(4): allreduce_rows(136+i, 140, "v_max_f32")
    for i in range(4): a(f"v_sub_f32 v{128+i}, v{128+i}, v{136+i}\nv_mul_f32 v{128+i}, s77, v{128+i}")
    for i in range(4): a(f"v_exp_f32 v{128+i}, v{128+i}")
    for i in range(4): a(f"v_mul_f32 v{132+i}, v{128+i}, v{132+i}")
    for s in (8, 4, 2, 1):
        for i in range(4): a(f"v_add_f32_dpp v{132+i}, v{132+i}, v{132+i} row_ror:{s} row_mask:0xf bank_mask:0xf")
    for i in range(4): allreduce_rows(132+i, 140, "v_add_f32")
    a("v_add_f32 v140, v132, v133\nv_add_f32 v141, v134, v135")
    a("s_sub_u32 s82, s82, 1\ns_cbranch_scc1 L_wdone\nv_cmp_u_f32 vcc, v140, v141\ns_cbranch_vccz L_wdone\ns_sleep 2\ns_branch L_wpoll")
    a.label("L_wdone")
    for i in range(4): a(f"v_rcp_f32 v{132+i}, v{132+i}")
    for i in range(4): a(f"v_mul_f32 v{128+i}, v{128+i}, v{132+i}")
    a(f"v_lshlrev_b32 v25, 4, v1\nds_write_b128 v25, v[128:131] offset:{L_W}")
    a.label("L_nomgr")
    a("v_lshlrev_b32 v16, 3, v0")
    a(f"s_lshl_b32 s24, s22, 14\ns_lshl_b32 s83, s3, 11\ns_add_u32 s24, s24, s83\ns_add_u32 s24, s24, {OP}")
    a("v_lshlrev_b32 v17, 4, v1")
    a("s_lshl_b32 s83, s3, 7\nv_lshl_add_u32 v18, v23, 4, s83")
    a("s_lshl_b32 s83, s3, 5\nv_lshl_add_u32 v19, v12, 2, s83")
    a("s_lshl_b32 s83, s3, 11\nv_lshl_add_u32 v21, v15, 10, v14\nv_add_u32 v21, s83, v21\n" + f"v_add_u32 v21, {L_AB}, v21")
    a("v_and_b32 v25, 15, v1\nv_lshlrev_b32 v22, 7, v25\nv_lshl_add_u32 v22, v24, 4, v22\ns_lshl_b32 s83, s3, 2\nv_add_u32 v22, s83, v22")
    a("v_lshlrev_b32 v26, 3, v19")
    a("s_waitcnt lgkmcnt(0)\ns_barrier")
    stamp()
    for w in range(8):
        a(f"ds_read_b64 v[{128+2*w}:{129+2*w}], v16 offset:{L_O + 4096*w}")
    a(f"ds_read_b128 v[144:147], v18 offset:{L_W}\nds_read_b128 v[148:151], v18 offset:{L_W + 64}\nds_read_b32 v152, v19 offset:{L_H}")
    a("s_waitcnt lgkmcnt(0)")
    for w in range(4): a(f"v_pk_add_f32 v[{128+2*w}:{129+2*w}], v[{128+2*w}:{129+2*w}], v[{136+2*w}:{137+2*w}]")
    a("v_pk_add_f32 v[128:129], v[128:129], v[132:133]\nv_pk_add_f32 v[130:131], v[130:131], v[134:135]\nv_pk_add_f32 v[128:129], v[128:129], v[130:131]")
    a(f"buffer_store_dwordx2 v[128:129], v8, {WS}, 0 offen sc1", 'op')
    a(f"buffer_load_dwordx4 v[160:163], v17, {WS}, s24 offen sc1", 'h3')
    a(f"buffer_load_dwordx4 v[164:167], v17, {WS}, s24 offen offset:1024 sc1", 'h3')
    afrag(152)
    a.wait_vm('wd')
    for cb in range(4):
        a(f"v_mfma_f32_16x16x32_bf16 v[{80+4*cb}:{83+4*cb}], v[28:31], v[{112+4*cb}:{115+4*cb}], 0")
    a("s_mov_b64 exec, s[80:81]")
    for cb in range(4):
        a(f"ds_write_b128 v21, v[{80+4*cb}:{83+4*cb}] offset:{16384 + 256*cb}")
    a(f"s_mov_b64 exec, -1\ns_mov_b32 s82, {SPIN}")
    a.label("L_h3poll")
    a("s_waitcnt vmcnt(0)")
    for i in range(4): a(f"v_mul_f32 v{168+i}, v{160+i}, v{144+i}")
    for i in range(4): a(f"v_fmac_f32 v{168+i}, v{164+i}, v{148+i}")
    a("v_cmp_u_f32 vcc, v168, v169\nv_cmp_u_f32 s[26:27], v170, v171\ns_or_b64 vcc, vcc, s[26:27]\ns_cbranch_scc0 L_h3done")
    a("s_sub_u32 s82, s82, 1\ns_cbranch_scc1 L_h3done\ns_mov_b64 exec, vcc")
    a(f"buffer_load_dwordx4 v[160:163], v17, {WS}, s24 offen sc1", False)
    a(f"buffer_load_dwordx4 v[164:167], v17, {WS}, s24 offen offset:1024 sc1", False)
    a("s_branch L_h3poll")
    a.label("L_h3done")
    a("s_mov_b64 exec, -1")
    stamp()
    treduce4(168)
    a(f"ds_write_b32 v22, v168 offset:{L_C}\ns_waitcnt lgkmcnt(0)\ns_barrier")
    a(f"ds_read_b128 v[128:131], v26 offset:{L_C}\nds_read_b128 v[132:135], v26 offset:{L_C + 16}\ns_waitcnt lgkmcnt(0)")
    a("v_pk_add_f32 v[128:129], v[128:129], v[132:133]\nv_pk_add_f32 v[130:131], v[130:131], v[134:135]\nv_pk_add_f32 v[128:129], v[128:129], v[130:131]\nv_add_f32 v128, v128, v129")
    a("v_cvt_pk_bf16_f32 v128, v128, v128")
    afrag(128)
    for cb in range(4):
        a(f"v_mfma_f32_16x16x32_bf16 v[{80+4*cb}:{83+4*cb}], v[28:31], v[{32+4*cb}:{35+4*cb}], 0")
    a(f"v_lshrrev_b32 v25, 8, v0\nv_lshlrev_b32 v25, 14, v25\nv_and_b32 v16, 255, v0\nv_lshl_add_u32 v25, v16, 2, v25\nv_add_u32 v25, {L_AB}, v25")
    a("s_mov_b64 exec, s[80:81]")
    for cb in range(4):
        a(f"ds_write_b128 v21, v[{80+4*cb}:{83+4*cb}] offset:{256*cb}")
    a("s_mov_b64 exec, -1\ns_waitcnt lgkmcnt(0)\ns_barrier")
    for k in range(8):
        a(f"ds_read2st64_b32 v[{128+2*k}:{129+2*k}], v25 offset0:{8*k} offset1:{8*k+4}")
    a("s_waitcnt lgkmcnt(0)")
    for w in range(4): a(f"v_pk_add_f32 v[{128+2*w}:{129+2*w}], v[{128+2*w}:{129+2*w}], v[{136+2*w}:{137+2*w}]")
    a("v_pk_add_f32 v[128:129], v[128:129], v[132:133]\nv_pk_add_f32 v[130:131], v[130:131], v[134:135]\nv_pk_add_f32 v[128:129], v[128:129], v[130:131]\nv_add_f32 v128, v128, v129")
    a(f"buffer_store_dword v128, v9, {WS}, 0 offen sc1", 'ab')
    stamp()
    a("s_cmp_lg_u32 s3, 0\ns_cbranch_scc1 L_fin")
    a(f"s_lshr_b32 s83, s84, 6\ns_lshl_b32 s83, s83, 17\ns_and_b32 s82, s84, 63\ns_lshl_b32 s82, s82, 4\ns_add_u32 s83, s83, s82\ns_add_u32 s83, s83, {AB}")
    a(f"v_lshlrev_b32 v17, 11, v1\ns_mov_b32 s82, {SPIN}")
    a.label("L_h4poll")
    a(f"buffer_load_dwordx4 v[160:163], v17, {WS}, s83 offen sc1", False)
    a(f"buffer_load_dwordx4 v[164:167], v17, {WS}, s83 offen offset:1024 sc1", False)
    a("s_waitcnt vmcnt(0)")
    a("v_add_f32 v168, v160, v161\nv_add_f32 v169, v162, v163\nv_add_f32 v170, v164, v165\nv_add_f32 v171, v166, v167")
    a("v_cmp_u_f32 vcc, v168, v169\nv_cmp_u_f32 s[26:27], v170, v171\ns_or_b64 vcc, vcc, s[26:27]\ns_cbranch_scc0 L_h4done")
    a("s_sub_u32 s82, s82, 1\ns_cbranch_scc1 L_h4done\ns_mov_b64 exec, vcc\ns_branch L_h4poll")
    a.label("L_h4done")
    a("s_mov_b64 exec, -1")
    treduce4(160); treduce4(164)
    for s in (8, 4, 2, 1):
        a(f"v_add_f32_dpp v160, v160, v160 row_ror:{s} row_mask:0xf bank_mask:0xf\nv_add_f32_dpp v164, v164, v164 row_ror:{s} row_mask:0xf bank_mask:0xf")
    a("v_cvt_pk_bf16_f32 v160, v160, v164\nv_lshlrev_b32 v27, 16, v27\nv_and_b32 v164, 0xffff0000, v160\nv_lshlrev_b32 v160, 16, v160")
    a("v_add_f32 v160, v27, v160\nv_cvt_pk_bf16_f32 v160, v160, v160\nv_and_b32 v160, 0xffff0000, v160\nv_add_f32 v160, v160, v164\nv_cvt_pk_bf16_f32 v160, v160, v160")
    a("s_mov_b32 s26, 0x00010001\ns_mov_b32 s27, 0x00010001\ns_mov_b64 exec, s[26:27]")
    a(f"buffer_store_short v160, v24, {OUT}, s85 offen", False)
    if debug:
        a("s_memrealtime s[88:89]\ns_waitcnt lgkmcnt(0)\ns_sub_u32 s88, s88, s86\nv_mov_b32 v160, s88\nv_mov_b32 v161, 0\ns_lshl_b32 s83, s2, 2\ns_mov_b64 exec, 1")
        a(f"buffer_store_dword v160, v161, {DBG}, s83 offen", False)
    a("s_mov_b64 exec, -1")
    a.label("L_fin")
    if stamps:
        stamp()
        n = nst[0]
        a("s_load_dwordx2 s[26:27], s[0:1], 88\ns_waitcnt vmcnt(0) lgkmcnt(0)")
        a(f"s_lshl_b32 s83, s2, 3\ns_add_u32 s83, s83, s3\ns_mul_i32 s83, s83, {8*n}\ns_add_u32 s83, s83, 0x8000000\ns_add_u32 s26, s26, s83\ns_addc_u32 s27, s27, 0")
        a("v_mov_b32 v7, 0\ns_mov_b64 exec, 1")
        for i in range(n):
            r = stampregs[i]
            a(f"v_mov_b32 v8, s{r}\nv_mov_b32 v9, s{r+1}\nglobal_store_dwordx2 v7, v[8:9], s[26:27] offset:{8*i}\ns_nop 1")
        print("stamps:", n, file=sys.stderr)
    a.label("L_end")
    a("s_endpgm")
    a.raw('.section .rodata,"a"\n.p2align 6\n' + f".amdhsa_kernel {NAME}_kernel")
    a.raw("  .amdhsa_next_free_vgpr 256\n  .amdhsa_next_free_sgpr 102\n  .amdhsa_accum_offset 256\n  .amdhsa_group_segment_fixed_size 0\n  .amdhsa_kernarg_size 96")
    a.raw("  .amdhsa_user_sgpr_count 2\n  .amdhsa_user_sgpr_kernarg_segment_ptr 1\n  .amdhsa_system_sgpr_workgroup_id_x 1\n.end_amdhsa_kernel")
    return a.text()

if __name__ == "__main__":
    open("k1.s", "w").write(gen())
    open("k1_st.s", "w").write(gen(stamps=True))
    open("k1_plain.s", "w").write(gen(nt=""))
    open("k1_dbg.s", "w").write(gen(debug=True))
    open("k1_plain_dbg.s", "w").write(gen(nt="", debug=True))
```

```python
import sys
from asmlib import Asm
NAME = "parallel_sum__gqa_block_cached__swiglu_ffn__decode"
HDR = open("cdna_kernels/" + NAME + ".s.ref").read().split("; Override launch")[0]

QP, ML, AB, OP, GU, WSN = 0x0, 0x10000, 0x20000, 0x100000, 0x200000, 0x300000
OOB = 0x40000000
L_QP, L_GU, L_Q, L_ML, L_W, L_H, L_C, L_O, L_AB, L_END = 0, 4096, 32768, 34816, 35328, 36352, 36608, 0, 40960, 73728
X, K, V, WQ, WGU, WO, WD, WS, DBG, OUT = [f"s[{b}:{b+3}]" for b in range(28, 68, 4)]
SPIN = 20000

def gen(stamps=False, nt=" nt", debug=False):
    a = Asm()
    nst = [0]
    stampregs = [86, 88, 90, 92, 94, 96, 98, 100, 4, 6, 8, 10, 12, 14, 16, 18]
    def stamp():
        if stamps:
            r = stampregs[nst[0]]; nst[0] += 1
            a(f"s_memrealtime s[{r}:{r+1}]")
    def srd(b, lo, n):
        a(f"s_mov_b32 s{b}, s{lo}\ns_mov_b32 s{b+1}, s{lo+1}\ns_mov_b32 s{b+2}, {n}\ns_mov_b32 s{b+3}, 0x20000")
    def allreduce_rows(v, t, op):
        a(f"v_mov_b32 v{t}, v{v}\nv_permlane32_swap_b32 v{v}, v{t}\n{op} v{v}, v{v}, v{t}")
        a(f"v_mov_b32 v{t}, v{v}\nv_permlane16_swap_b32 v{v}, v{t}\n{op} v{v}, v{v}, v{t}")
    def allreduce_inrow(v, op, steps=(8, 4, 2, 1)):
        for s in steps:
            a(f"{op}_dpp v{v}, v{v}, v{v} row_ror:{s} row_mask:0xf bank_mask:0xf")
    def treduce4(r):
        a(f"v_permlane32_swap_b32 v{r}, v{r+1}\nv_permlane32_swap_b32 v{r+2}, v{r+3}")
        a(f"v_add_f32 v{r}, v{r}, v{r+1}\nv_add_f32 v{r+2}, v{r+2}, v{r+3}")
        a(f"v_permlane16_swap_b32 v{r}, v{r+2}\nv_add_f32 v{r}, v{r}, v{r+2}")
    def afrag(xx):
        for d in range(4):
            a(f"v_and_b32 v{28+d}, v{xx}, v{2+d}")

    a.raw(HDR + f"; @launch grid=(256,1,1) block=(512,1,1) lds={L_END}")
    a.raw('.amdgcn_target "amdgcn-amd-amdhsa--gfx950"\n.text\n' + f".globl {NAME}_kernel\n.p2align 8\n.type {NAME}_kernel,@function\n{NAME}_kernel:")
    stamp()
    if debug: a("s_memrealtime s[86:87]")
    a("s_cmp_ge_u32 s2, 256\ns_cbranch_scc1 L_end")
    a("s_load_dwordx16 s[4:19], s[0:1], 0\ns_load_dwordx8 s[20:27], s[0:1], 64")
    a("v_lshrrev_b32 v12, 6, v0\nv_and_b32 v1, 63, v0\nv_readfirstlane_b32 s3, v12")
    a("v_lshrrev_b32 v12, 3, v1\nv_and_b32 v13, 7, v1")
    a("v_lshlrev_b32 v14, 5, v1")
    a("v_lshlrev_b32 v15, 1, v12")
    a("v_lshlrev_b32 v20, 4, v13")
    a("v_lshl_add_u32 v21, v12, 13, v20")
    a("s_movk_i32 s83, 7168\nv_mad_u32_u24 v22, v12, s83, v20")
    a("s_lshr_b32 s68, s2, 6")
    a("s_and_b32 s69, s2, 63")
    a("s_bfe_u32 s70, s2, 0x20004")
    a("s_lshl_b32 s70, s70, 3\ns_add_u32 s70, s70, s3\ns_lshl_b32 s70, s70, 5")
    a("s_lshl_b32 s71, s70, 1")
    a("s_lshl_b32 s72, s70, 13")
    a("s_lshl_b32 s73, s68, 11\ns_add_u32 s72, s72, s73")
    a("s_and_b32 s73, s2, 15\ns_lshl_b32 s73, s73, 7\ns_add_u32 s72, s72, s73")
    a("s_lshr_b32 s73, s2, 3\ns_lshl_b32 s73, s73, 2\ns_lshr_b32 s74, s3, 1\ns_add_u32 s73, s73, s74\ns_lshl_b32 s73, s73, 3")
    a("s_lshl_b32 s74, s73, 1")
    a("s_mul_i32 s75, s73, 7168\ns_and_b32 s83, s2, 7\ns_mul_i32 s83, s83, 896\ns_add_u32 s75, s75, s83")
    a("s_and_b32 s84, s2, 7\ns_lshl_b32 s84, s84, 5\ns_lshr_b32 s83, s2, 3\ns_add_u32 s84, s84, s83")
    a("s_lshl_b32 s85, s84, 3")
    a("v_lshrrev_b32 v23, 4, v1\nv_and_b32 v24, 1, v23\nv_lshrrev_b32 v25, 1, v23\nv_lshl_or_b32 v24, v24, 1, v25\nv_lshlrev_b32 v24, 1, v24")
    a("s_waitcnt lgkmcnt(0)")
    srd(28, 4, 2048); srd(40, 10, 8388608)
    a(f"buffer_load_dwordx4 v[104:107], v14, {X}, 0 offen", 'x')
    a(f"buffer_load_dwordx4 v[108:111], v14, {X}, 0 offen offset:16", 'x')
    for u in range(4):
        a(f"buffer_load_ushort v{96+u}, v15, {X}, s71 offen offset:{16*u}", 'x')
    a(f"buffer_load_ushort v100, v15, {X}, s74 offen", 'x')
    a(f"buffer_load_ushort v27, v24, {X}, s85 offen", 'x')
    for u in range(4):
        a(f"buffer_load_dwordx4 v[{32+4*u}:{35+4*u}], v21, {WQ}, s72 offen{nt}", 'wq')
        if u < 3: a("s_add_u32 s72, s72, 0x10000")
    srd(56, 26, WSN)
    a("v_mov_b32 v16, -1\nv_mov_b32 v17, -1\nv_mov_b32 v18, -1\nv_mov_b32 v19, -1")
    a(f"s_lshl_b32 s83, s68, 18\ns_lshl_b32 s82, s69, 8\ns_add_u32 s83, s83, s82\ns_add_u32 s83, s83, {OP}")
    a("v_lshrrev_b32 v8, 5, v0\nv_lshlrev_b32 v8, 14, v8\nv_and_b32 v9, 31, v0\nv_lshl_add_u32 v8, v9, 3, v8\nv_add_u32 v8, s83, v8")
    a(f"s_lshl_b32 s83, s2, 11\ns_add_u32 s83, s83, {AB}\nv_lshl_add_u32 v9, v0, 2, s83")
    a("s_lshr_b32 s83, s2, 3\ns_lshl_b32 s83, s83, 1\ns_lshr_b32 s82, s3, 2\ns_add_u32 s83, s83, s82\ns_mul_i32 s83, s83, 14336")
    a("s_and_b32 s82, s2, 7\ns_mul_i32 s82, s82, 1792\ns_add_u32 s83, s83, s82\ns_and_b32 s82, s3, 3\ns_mul_i32 s82, s82, 448\ns_add_u32 s83, s83, s82")
    a(f"s_add_u32 s83, s83, {GU}\nv_lshl_add_u32 v10, v1, 4, s83\nv_mov_b32 v26, {OOB}\nv_cmp_gt_u32 vcc, 28, v1\nv_cndmask_b32 v10, v26, v10, vcc")
    a(f"s_lshl_b32 s83, s68, 12\ns_lshl_b32 s82, s69, 5\ns_add_u32 s83, s83, s82\ns_add_u32 s83, s83, {ML}")
    a("v_lshrrev_b32 v11, 2, v0\nv_lshlrev_b32 v11, 11, v11\nv_and_b32 v25, 3, v0\nv_lshl_add_u32 v11, v25, 2, v11\nv_add_u32 v11, s83, v11")
    a("v_cmp_gt_u32 vcc, 8, v0\nv_cndmask_b32 v11, v26, v11, vcc")
    a(f"buffer_store_dwordx2 v[16:17], v8, {WS}, 0 offen sc1", 'clr')
    a(f"buffer_store_dword v16, v9, {WS}, 0 offen sc1", 'clr')
    a(f"buffer_store_dwordx4 v[16:19], v10, {WS}, 0 offen sc1", 'clr')
    a(f"buffer_store_dword v16, v11, {WS}, 0 offen sc1", 'clr')
    a(f"buffer_store_dword v16, v11, {WS}, 0 offen offset:16 sc1", 'clr')
    a("s_bitcmp1_b32 s3, 0\ns_cselect_b32 s44, s18, s16\ns_cselect_b32 s45, s19, s17\ns_mov_b32 s46, 7340032\ns_mov_b32 s47, 0x20000")
    for u in range(7):
        a(f"buffer_load_dwordx4 v[{48+4*u}:{51+4*u}], v22, {WGU}, s75 offen offset:{128*u}{nt}", 'wgu')
    a("s_getpc_b64 s[82:83]")
    a.label("L_pc")
    a("v_lshlrev_b32 v25, 5, v0\nv_min_u32 v25, L_end-L_pc-4, v25")
    a("global_load_dword v112, v25, s[82:83]", 'pf')
    srd(32, 6, 0x4000000); srd(36, 8, 0x4000000); srd(48, 12, 8388608); srd(52, 20, 7340032); srd(60, 24, 256); srd(64, 22, 2048)
    a("s_mov_b32 s76, 0x3db504f3\ns_mov_b32 s77, 0x3fb8aa3b\ns_mov_b32 s78, 0x05040100\ns_mov_b32 s79, 0x07060302")
    a("s_mov_b32 s80, 0x00ff00ff\ns_mov_b32 s81, 0xff00ff00")
    a("v_and_b32 v25, 1, v1\nv_cmp_eq_u32 vcc, 1, v25\nv_mov_b32 v25, 0xffff\nv_mov_b32 v26, 0xffff0000\nv_cndmask_b32 v25, v25, v26, vcc\nv_lshrrev_b32 v26, 1, v13")
    for d in range(4):
        a(f"v_cmp_eq_u32 vcc, {d}, v26\nv_cndmask_b32 v{2+d}, 0, v25, vcc")
    a("v_and_b32 v25, 15, v1\nv_lshlrev_b32 v6, 8, v25\nv_lshl_add_u32 v6, v23, 4, v6\nv_lshlrev_b32 v7, 4, v25\nv_lshl_add_u32 v7, v23, 10, v7")
    a("s_mov_b32 s22, s69\ns_mov_b32 s23, s68")
    a("s_lshr_b32 s20, s22, 3\ns_lshl_b32 s20, s20, 9\ns_lshl_b32 s83, s3, 4\ns_add_u32 s20, s20, s83\ns_and_b32 s83, s22, 7\ns_add_u32 s20, s20, s83\ns_lshl_b32 s20, s20, 11\ns_lshl_b32 s83, s23, 9\ns_add_u32 s20, s20, s83")
    a("s_mul_i32 s21, s22, 56\ns_lshl_b32 s82, s3, 3\ns_add_u32 s21, s21, s82\ns_lshl_b32 s21, s21, 11\ns_add_u32 s21, s21, s83\ns_cmp_eq_u32 s3, 7\ns_cselect_b32 s21, 7340032, s21")
    a("s_lshl_b32 s68, s23, 24\ns_lshl_b32 s83, s22, 3\ns_add_u32 s83, s83, s3\ns_lshl_b32 s83, s83, 12\ns_add_u32 s68, s68, s83")
    for t in range(1, 8):
        a(f"s_add_u32 s{68+t}, s68, {t << 21}")
    a(f"v_lshlrev_b32 v25, 3, v1\nds_write_b64 v25, v[16:17] offset:{L_ML}")
    a("v_and_b32 v25, 1, v23\nv_lshlrev_b32 v25, 4, v25\nv_lshl_add_u32 v14, v13, 5, v25")
    a("v_lshrrev_b32 v15, 5, v1")
    a.wait_vm('x')
    stamp()
    for i in range(8):
        a(f"v_lshlrev_b32 v{112+2*i}, 16, v{104+i}\nv_and_b32 v{113+2*i}, 0xffff0000, v{104+i}") if False else None
    for i in range(8):
        a(f"v_lshlrev_b32 v{76+2*i}, 16, v{104+i}\nv_and_b32 v{77+2*i}, 0xffff0000, v{104+i}")
    a("v_add_f32 v92, v76, v77")
    for i in range(2, 16): a(f"v_add_f32 v92, v92, v{76+i}")
    allreduce_inrow(92, "v_add_f32"); allreduce_rows(92, 93, "v_add_f32")
    a("v_mul_f32 v92, 0x3a800000, v92")
    for i in range(16): a(f"v_sub_f32 v{76+i}, v{76+i}, v92")
    a("v_mul_f32 v94, v76, v76")
    for i in range(1, 16): a(f"v_fmac_f32 v94, v{76+i}, v{76+i}")
    allreduce_inrow(94, "v_add_f32"); allreduce_rows(94, 93, "v_add_f32")
    a("v_mul_f32 v94, 0x3a800000, v94\nv_cvt_pk_bf16_f32 v94, v94, v92")
    a("v_and_b32 v92, 0xffff0000, v94\nv_lshlrev_b32 v94, 16, v94")
    a("v_add_f32 v94, 0x3727c5ac, v94\nv_cvt_pk_bf16_f32 v94, v94, v94\nv_and_b32 v94, 0xffff0000, v94")
    a("v_sqrt_f32 v94, v94\nv_cvt_pk_bf16_f32 v94, v94, v94\nv_and_b32 v94, 0xffff0000, v94\nv_rcp_f32 v95, v94")
    for i in range(5):
        r = 96 + i
        a(f"v_lshlrev_b32 v{r}, 16, v{r}\nv_sub_f32 v{r}, v{r}, v92\nv_cvt_pk_bf16_f32 v{r}, v{r}, v{r}\nv_and_b32 v{r}, 0xffff0000, v{r}")
        a(f"v_mul_f32 v76, v{r}, v95\nv_fma_f32 v77, -v76, v94, v{r}\nv_fma_f32 v76, v77, v95, v76\nv_cvt_pk_bf16_f32 v{r}, v76, v76")
    a.wait_vm('clr')
    for u in range(4):
        afrag(96 + u)
        a(f"v_mfma_f32_16x16x32_bf16 v[76:79], v[28:31], v[{32+4*u}:{35+4*u}], {'0' if u == 0 else 'v[76:79]'}")
    a("s_lshl_b32 s83, s3, 9\nv_lshl_add_u32 v25, v15, 8, v14\nv_add_u32 v25, s83, v25")
    a(f"s_mov_b64 exec, s[80:81]\nds_write_b128 v25, v[76:79] offset:{L_QP}\ns_mov_b64 exec, -1")
    a("s_waitcnt lgkmcnt(0)\ns_barrier")
    stamp()
    a("s_cmp_lg_u32 s3, 0\ns_cbranch_scc1 L_noqpub")
    a("v_lshlrev_b32 v25, 2, v1")
    for k in range(8):
        a(f"ds_read2st64_b32 v[{76+2*k}:{77+2*k}], v25 offset0:{(L_QP>>8)+2*k} offset1:{(L_QP>>8)+2*k+1}")
    a("s_lshr_b32 s83, s2, 4\ns_lshl_b32 s83, s83, 12\ns_and_b32 s82, s2, 15\ns_lshl_b32 s82, s82, 8\ns_add_u32 s83, s83, s82")
    a("s_waitcnt lgkmcnt(0)")
    for k in range(1, 16): a(f"v_add_f32 v76, v76, v{76+k}")
    a(f"buffer_store_dword v76, v25, {WS}, s83 offen sc1", False)
    a("v_mov_b32 v77, 1\nv_mov_b32 v78, 0\ns_waitcnt vmcnt(0)\ns_mov_b64 exec, 1")
    a(f"buffer_store_byte v77, v78, {DBG}, s2 offen sc1", False)
    a("s_mov_b64 exec, -1")
    a.label("L_noqpub")
    def kload(t):
        for j in range(4):
            r = 128 + 16*t + 4*j
            a(f"buffer_load_dwordx4 v[{r}:{r+3}], v6, {K}, s{68+t} offen offset:{64*j}{nt}", f'k{t}')
    def vload(t):
        for j in range(4):
            r = 128 + 16*t + 4*j
            a(f"buffer_load_dwordx4 v[{r}:{r+3}], v7, {V}, s{68+t} offen offset:{256*j}{nt}", f'v{t}')
    kload(0); kload(1)
    afrag(100)
    a.wait_vm('wgu')
    for u in range(7):
        a(f"v_mfma_f32_16x16x32_bf16 v[{76+4*u}:{79+4*u}], v[28:31], v[{48+4*u}:{51+4*u}], 0")
    a("s_and_b32 s83, s3, 1\ns_lshl_b32 s83, s83, 3\ns_and_b32 s82, s3, 6\ns_add_u32 s83, s83, s82\nv_add_u32 v25, s83, v15\ns_movk_i32 s83, 1792\nv_mad_u32_u24 v25, v25, s83, v14")
    a("s_mov_b64 exec, s[80:81]")
    for u in range(7):
        a(f"ds_write_b128 v25, v[{76+4*u}:{79+4*u}] offset:{L_GU + 256*u}")
    a("s_mov_b64 exec, -1")
    a("s_cmp_lg_u32 s3, 0\ns_cbranch_scc1 L_noq")
    a(f"v_lshlrev_b32 v25, 2, v1\ns_mov_b32 s82, {SPIN}\ns_mov_b32 s83, 0x01010101")
    a.label("L_flagpoll")
    a(f"buffer_load_dword v26, v25, {DBG}, 0 offen sc1", False)
    a("s_sub_u32 s82, s82, 1\ns_cbranch_scc1 L_flagdone\ns_waitcnt vmcnt(0)\nv_cmp_ne_u32 vcc, s83, v26\ns_cbranch_vccz L_flagdone\ns_sleep 2\ns_branch L_flagpoll")
    a.label("L_flagdone")
    stamp()
    a("v_lshlrev_b32 v25, 4, v1\ns_lshl_b32 s83, s23, 14")
    for ks in range(4):
        for qd in range(4):
            r = 192 + 16*ks + 4*qd
            a(f"buffer_load_dwordx4 v[{r}:{r+3}], v25, {WS}, s83 offen offset:{1024*qd} sc1", False)
        if ks < 3: a("s_add_u32 s83, s83, 4096")
    a("v_lshlrev_b32 v25, 3, v1\ns_waitcnt vmcnt(0)")
    for i in range(16):
        a(f"v_add_f32 v{192+i}, v{192+i}, v{208+i}\nv_add_f32 v{224+i}, v{224+i}, v{240+i}")
    for i in range(16):
        a(f"v_add_f32 v{192+i}, v{192+i}, v{224+i}")
    for i in range(8):
        a(f"v_cvt_pk_bf16_f32 v{208+i}, v{192+2*i}, v{193+2*i}")
    for qd in range(4):
        a(f"ds_write_b64 v25, v[{208+2*qd}:{209+2*qd}] offset:{L_Q + 512*qd}")
    a("s_waitcnt lgkmcnt(0)")
    if stamps:
        a("s_branch L_noq2")
    a.label("L_noq")
    if stamps:
        nst[0] -= 1; stamp()
        a.label("L_noq2")
    stamp()
    for t in range(2, 8): kload(t)
    a("s_waitcnt lgkmcnt(0)\ns_barrier")
    stamp()
    a("v_lshlrev_b32 v25, 8, v13\nv_lshl_add_u32 v25, v23, 4, v25")
    for j in range(4):
        a(f"ds_read_b128 v[{32+4*j}:{35+4*j}], v25 offset:{L_Q + 64*j}")
    a("s_lshr_b32 s83, s3, 2\ns_mul_i32 s83, s83, 14336\ns_and_b32 s82, s3, 3\ns_mul_i32 s82, s82, 448\ns_add_u32 s83, s83, s82")
    a("v_min_u32 v26, 27, v1\nv_lshl_add_u32 v26, v26, 4, s83")
    for k in range(8):
        a(f"ds_read_b128 v[{80+4*k}:{83+4*k}], v26 offset:{L_GU + 1792*k}")
    a("s_waitcnt lgkmcnt(0)")
    for k in range(1, 8):
        for i in range(4): a(f"v_add_f32 v{80+i}, v{80+i}, v{80+4*k+i}")
    a(f"buffer_store_dwordx4 v[80:83], v10, {WS}, 0 offen sc1", 'gu')
    for t in range(8):
        a.wait_vm(f'k{t}')
        for j in range(4):
            r = 128 + 16*t + 4*j
            a(f"v_mfma_f32_16x16x32_bf16 v[{48+4*t}:{51+4*t}], v[{r}:{r+3}], v[{32+4*j}:{35+4*j}], {'0' if j == 0 else f'v[{48+4*t}:{51+4*t}]'}")
    stamp()
    vload(0); vload(1)
    for k in range(16):
        r = 48 + 2*k
        a(f"v_cvt_pk_bf16_f32 v25, v{r}, v{r+1}\nv_lshlrev_b32 v{r}, 16, v25\nv_and_b32 v{r+1}, 0xffff0000, v25")
        a(f"v_mul_f32 v{r}, s76, v{r}\nv_mul_f32 v{r+1}, s76, v{r+1}")
        a(f"v_cvt_pk_bf16_f32 v25, v{r}, v{r+1}\nv_lshlrev_b32 v{r}, 16, v25\nv_and_b32 v{r+1}, 0xffff0000, v25")
        if k == 0: a(f"v_max_f32 v16, v{r}, v{r+1}")
        else: a(f"v_max3_f32 v16, v16, v{r}, v{r+1}")
    allreduce_rows(16, 25, "v_max_f32")
    a("v_mul_f32 v18, s77, v16")
    for k in range(32):
        a(f"v_fma_f32 v{80+k}, v{48+k}, s77, -v18")
    for k in range(32):
        a(f"v_exp_f32 v{80+k}, v{80+k}")
    for k in range(16): a(f"v_add_f32 v{80+k}, v{80+k}, v{96+k}")
    for k in range(8): a(f"v_add_f32 v{80+k}, v{80+k}, v{88+k}")
    for k in range(4): a(f"v_add_f32 v{80+k}, v{80+k}, v{84+k}")
    a("v_add_f32 v80, v80, v81\nv_add_f32 v82, v82, v83\nv_add_f32 v17, v80, v82")
    allreduce_rows(17, 25, "v_add_f32")
    a(f"s_lshl_b32 s83, s3, 6\nv_lshl_add_u32 v25, v13, 3, s83\nds_write_b64 v25, v[16:17] offset:{L_ML}")
    for t in range(2, 8): vload(t)
    a("v_lshl_add_u32 v21, v12, 11, v20")
    for cb in range(4):
        a(f"buffer_load_dwordx4 v[{112+4*cb}:{115+4*cb}], v21, {WD}, s21 offen offset:{128*cb}{nt}", 'wd')
    a("v_and_b32 v22, 3, v12\nv_lshlrev_b32 v22, 4, v22\nv_add_u32 v22, v22, v15\nv_lshl_add_u32 v22, v22, 14, v20")
    for cb in range(4):
        a(f"buffer_load_dwordx4 v[{32+4*cb}:{35+4*cb}], v22, {WO}, s20 offen offset:{128*cb}{nt}", 'wo')
    stamp()
    a(f"v_lshlrev_b32 v25, 3, v1\ns_mov_b32 s82, {SPIN*8}")
    a.label("L_mlspin")
    a(f"ds_read_b64 v[16:17], v25 offset:{L_ML}\ns_sub_u32 s82, s82, 1\ns_cbranch_scc1 L_mldone\ns_waitcnt lgkmcnt(0)\nv_cmp_u_f32 vcc, v16, v17\ns_cbranch_vccz L_mldone\ns_sleep 1\ns_branch L_mlspin")
    a.label("L_mldone")
    a("s_waitcnt lgkmcnt(0)\nv_mov_b32 v18, v16")
    allreduce_inrow(18, "v_max_f32", (8,)); allreduce_rows(18, 25, "v_max_f32")
    a("s_cmp_lg_u32 s3, 0\ns_cbranch_scc1 L_nomlpub")
    a("v_sub_f32 v16, v16, v18\nv_mul_f32 v16, s77, v16\nv_exp_f32 v16, v16\nv_mul_f32 v17, v16, v17")
    allreduce_inrow(17, "v_add_f32", (8,)); allreduce_rows(17, 25, "v_add_f32")
    a(f"buffer_store_dword v18, v11, {WS}, 0 offen sc1", False)
    a(f"buffer_store_dword v17, v11, {WS}, 0 offen offset:16 sc1", False)
    a.label("L_nomlpub")
    a("v_mul_f32 v19, s77, v18")
    for k in range(32): a(f"v_fma_f32 v{48+k}, v{48+k}, s77, -v19")
    for k in range(32): a(f"v_exp_f32 v{48+k}, v{48+k}")
    for k in range(16): a(f"v_cvt_pk_bf16_f32 v{48+k}, v{48+2*k}, v{49+2*k}")
    for b in range(4):
        a.wait_vm(f'v{2*b+1}')
        for e in range(8):
            tmp = 64 + 4*(e & 3)
            for jj in range(4):
                lo = 128 + 32*b + 8*jj + (e >> 1); hi = lo + 4
                a(f"v_perm_b32 v{tmp+jj}, v{hi}, v{lo}, s{78 + (e & 1)}")
            a(f"v_mfma_f32_16x16x32_bf16 v[{80+4*e}:{83+4*e}], v[{48+4*b}:{51+4*b}], v[{tmp}:{tmp+3}], {'0' if b == 0 else f'v[{80+4*e}:{83+4*e}]'}")
    stamp()
    a("s_lshl_b32 s83, s3, 12\nv_and_b32 v25, 15, v1\nv_lshlrev_b32 v25, 4, v25\nv_lshl_add_u32 v25, v23, 11, v25\nv_add_u32 v25, s83, v25")
    a("s_mov_b32 exec_hi, 0")
    for e in range(8):
        a(f"ds_write_b128 v25, v[{80+4*e}:{83+4*e}] offset:{L_O + 256*e}")
    a("s_mov_b64 exec, -1")
    a("s_cmp_lg_u32 s3, 0\ns_cbranch_scc1 L_nomgr")
    a(f"v_and_b32 v25, 15, v1\ns_movk_i32 s83, 28672\nv_mul_u32_u24 v26, s83, v23\nv_lshl_add_u32 v26, v25, 4, v26\nv_cmp_gt_u32 vcc, 14, v25\nv_mov_b32 v25, {OOB}\nv_cndmask_b32 v26, v25, v26, vcc")
    a(f"s_mov_b32 s82, {SPIN}")
    a.label("L_hpoll")
    a(f"s_mul_i32 s83, s22, 224\ns_add_u32 s83, s83, {GU}")
    for kk in range(8):
        for mat in range(2):
            r = 128 + 32*mat + 4*kk
            a(f"buffer_load_dwordx4 v[{r}:{r+3}], v26, {WS}, s83 offen sc1", False)
            a(f"s_add_u32 s83, s83, {14336 if mat == 0 else 114688 - 14336}")
    a("s_waitcnt vmcnt(0)")
    for mat in range(2):
        for kk in range(1, 8):
            for i in range(4): a(f"v_add_f32 v{128+32*mat+i}, v{128+32*mat+i}, v{128+32*mat+4*kk+i}")
    treduce4(128); treduce4(160)
    a("s_sub_u32 s82, s82, 1\ns_cbranch_scc1 L_hdone\nv_cmp_u_f32 vcc, v128, v160\ns_cbranch_vccz L_hdone\ns_sleep 2\ns_branch L_hpoll")
    a.label("L_hdone")
    a("v_cvt_pk_bf16_f32 v128, v128, v160\nv_and_b32 v160, 0xffff0000, v128\nv_lshlrev_b32 v128, 16, v128")
    a("v_mul_f32 v129, s77, v128\nv_exp_f32 v129, -v129\nv_add_f32 v129, 1.0, v129\nv_rcp_f32 v129, v129\nv_mul_f32 v128, v128, v129")
    a("v_cvt_pk_bf16_f32 v128, v128, v128\nv_and_b32 v128, 0xffff0000, v128\nv_mul_f32 v128, v128, v160\nv_cvt_pk_bf16_f32 v128, v128, v128")
    a(f"v_and_b32 v25, 15, v1\nv_lshlrev_b32 v25, 4, v25\nv_lshl_add_u32 v25, v24, 1, v25\nds_write_b32 v25, v128 offset:{L_H}")
    a(f"s_lshr_b32 s83, s22, 3\ns_lshl_b32 s83, s83, 11\ns_add_u32 s83, s83, {ML}\nv_lshlrev_b32 v26, 5, v1\ns_mov_b32 s82, {SPIN}")
    a.label("L_wpoll")
    a(f"buffer_load_dwordx4 v[128:131], v26, {WS}, s83 offen sc1", False)
    a(f"buffer_load_dwordx4 v[132:135], v26, {WS}, s83 offen offset:16 sc1", False)
    a("s_waitcnt vmcnt(0)")
    for i in range(4): a(f"v_mov_b32 v{136+i}, v{128+i}")
    for s in (8, 4, 2, 1):
        for i in range(4): a(f"v_max_f32_dpp v{136+i}, v{136+i}, v{136+i} row_ror:{s} row_mask:0xf bank_mask:0xf")
    for i in range(4): allreduce_rows(136+i, 140, "v_max_f32")
    for i in range(4): a(f"v_sub_f32 v{128+i}, v{128+i}, v{136+i}\nv_mul_f32 v{128+i}, s77, v{128+i}")
    for i in range(4): a(f"v_exp_f32 v{128+i}, v{128+i}")
    for i in range(4): a(f"v_mul_f32 v{132+i}, v{128+i}, v{132+i}")
    for s in (8, 4, 2, 1):
        for i in range(4): a(f"v_add_f32_dpp v{132+i}, v{132+i}, v{132+i} row_ror:{s} row_mask:0xf bank_mask:0xf")
    for i in range(4): allreduce_rows(132+i, 140, "v_add_f32")
    a("v_add_f32 v140, v132, v133\nv_add_f32 v141, v134, v135")
    a("s_sub_u32 s82, s82, 1\ns_cbranch_scc1 L_wdone\nv_cmp_u_f32 vcc, v140, v141\ns_cbranch_vccz L_wdone\ns_sleep 2\ns_branch L_wpoll")
    a.label("L_wdone")
    for i in range(4): a(f"v_rcp_f32 v{132+i}, v{132+i}")
    for i in range(4): a(f"v_mul_f32 v{128+i}, v{128+i}, v{132+i}")
    a(f"v_lshlrev_b32 v25, 4, v1\nds_write_b128 v25, v[128:131] offset:{L_W}")
    a.label("L_nomgr")
    a("v_lshlrev_b32 v16, 3, v0")
    a(f"s_lshl_b32 s24, s22, 14\ns_lshl_b32 s83, s3, 11\ns_add_u32 s24, s24, s83\ns_add_u32 s24, s24, {OP}")
    a("v_lshlrev_b32 v17, 4, v1")
    a("s_lshl_b32 s83, s3, 7\nv_lshl_add_u32 v18, v23, 4, s83")
    a("s_lshl_b32 s83, s3, 5\nv_lshl_add_u32 v19, v12, 2, s83")
    a("s_lshl_b32 s83, s3, 11\nv_lshl_add_u32 v21, v15, 10, v14\nv_add_u32 v21, s83, v21\n" + f"v_add_u32 v21, {L_AB}, v21")
    a("v_and_b32 v25, 15, v1\nv_lshlrev_b32 v22, 7, v25\nv_lshl_add_u32 v22, v24, 4, v22\ns_lshl_b32 s83, s3, 2\nv_add_u32 v22, s83, v22")
    a("v_lshlrev_b32 v26, 3, v19")
    a("s_waitcnt lgkmcnt(0)\ns_barrier")
    stamp()
    for w in range(8):
        a(f"ds_read_b64 v[{128+2*w}:{129+2*w}], v16 offset:{L_O + 4096*w}")
    a(f"ds_read_b128 v[144:147], v18 offset:{L_W}\nds_read_b128 v[148:151], v18 offset:{L_W + 64}\nds_read_b32 v152, v19 offset:{L_H}")
    a("s_waitcnt lgkmcnt(0)")
    for w in range(4): a(f"v_pk_add_f32 v[{128+2*w}:{129+2*w}], v[{128+2*w}:{129+2*w}], v[{136+2*w}:{137+2*w}]")
    a("v_pk_add_f32 v[128:129], v[128:129], v[132:133]\nv_pk_add_f32 v[130:131], v[130:131], v[134:135]\nv_pk_add_f32 v[128:129], v[128:129], v[130:131]")
    a(f"buffer_store_dwordx2 v[128:129], v8, {WS}, 0 offen sc1", 'op')
    a(f"buffer_load_dwordx4 v[160:163], v17, {WS}, s24 offen sc1", 'h3')
    a(f"buffer_load_dwordx4 v[164:167], v17, {WS}, s24 offen offset:1024 sc1", 'h3')
    afrag(152)
    a.wait_vm('wd')
    for cb in range(4):
        a(f"v_mfma_f32_16x16x32_bf16 v[{80+4*cb}:{83+4*cb}], v[28:31], v[{112+4*cb}:{115+4*cb}], 0")
    a("s_mov_b64 exec, s[80:81]")
    for cb in range(4):
        a(f"ds_write_b128 v21, v[{80+4*cb}:{83+4*cb}] offset:{16384 + 256*cb}")
    a(f"s_mov_b64 exec, -1\ns_mov_b32 s82, {SPIN}")
    a.label("L_h3poll")
    a("s_waitcnt vmcnt(0)")
    for i in range(4): a(f"v_mul_f32 v{168+i}, v{160+i}, v{144+i}")
    for i in range(4): a(f"v_fmac_f32 v{168+i}, v{164+i}, v{148+i}")
    a("v_cmp_u_f32 vcc, v168, v169\nv_cmp_u_f32 s[26:27], v170, v171\ns_or_b64 vcc, vcc, s[26:27]\ns_cbranch_scc0 L_h3done")
    a("s_sub_u32 s82, s82, 1\ns_cbranch_scc1 L_h3done\ns_mov_b64 exec, vcc")
    a(f"buffer_load_dwordx4 v[160:163], v17, {WS}, s24 offen sc1", False)
    a(f"buffer_load_dwordx4 v[164:167], v17, {WS}, s24 offen offset:1024 sc1", False)
    a("s_branch L_h3poll")
    a.label("L_h3done")
    a("s_mov_b64 exec, -1")
    stamp()
    treduce4(168)
    a(f"ds_write_b32 v22, v168 offset:{L_C}\ns_waitcnt lgkmcnt(0)\ns_barrier")
    a(f"ds_read_b128 v[128:131], v26 offset:{L_C}\nds_read_b128 v[132:135], v26 offset:{L_C + 16}\ns_waitcnt lgkmcnt(0)")
    a("v_pk_add_f32 v[128:129], v[128:129], v[132:133]\nv_pk_add_f32 v[130:131], v[130:131], v[134:135]\nv_pk_add_f32 v[128:129], v[128:129], v[130:131]\nv_add_f32 v128, v128, v129")
    a("v_cvt_pk_bf16_f32 v128, v128, v128")
    afrag(128)
    for cb in range(4):
        a(f"v_mfma_f32_16x16x32_bf16 v[{80+4*cb}:{83+4*cb}], v[28:31], v[{32+4*cb}:{35+4*cb}], 0")
    a(f"v_lshrrev_b32 v25, 8, v0\nv_lshlrev_b32 v25, 14, v25\nv_and_b32 v16, 255, v0\nv_lshl_add_u32 v25, v16, 2, v25\nv_add_u32 v25, {L_AB}, v25")
    a("s_mov_b64 exec, s[80:81]")
    for cb in range(4):
        a(f"ds_write_b128 v21, v[{80+4*cb}:{83+4*cb}] offset:{256*cb}")
    a("s_mov_b64 exec, -1\ns_waitcnt lgkmcnt(0)\ns_barrier")
    for k in range(8):
        a(f"ds_read2st64_b32 v[{128+2*k}:{129+2*k}], v25 offset0:{8*k} offset1:{8*k+4}")
    a("s_waitcnt lgkmcnt(0)")
    for w in range(4): a(f"v_pk_add_f32 v[{128+2*w}:{129+2*w}], v[{128+2*w}:{129+2*w}], v[{136+2*w}:{137+2*w}]")
    a("v_pk_add_f32 v[128:129], v[128:129], v[132:133]\nv_pk_add_f32 v[130:131], v[130:131], v[134:135]\nv_pk_add_f32 v[128:129], v[128:129], v[130:131]\nv_add_f32 v128, v128, v129")
    a(f"buffer_store_dword v128, v9, {WS}, 0 offen sc1", 'ab')
    stamp()
    a("s_cmp_lg_u32 s3, 0\ns_cbranch_scc1 L_fin")
    a(f"s_lshr_b32 s83, s84, 6\ns_lshl_b32 s83, s83, 17\ns_and_b32 s82, s84, 63\ns_lshl_b32 s82, s82, 4\ns_add_u32 s83, s83, s82\ns_add_u32 s83, s83, {AB}")
    a(f"v_lshlrev_b32 v17, 11, v1\ns_mov_b32 s82, {SPIN}")
    a.label("L_h4poll")
    a(f"buffer_load_dwordx4 v[160:163], v17, {WS}, s83 offen sc1", False)
    a(f"buffer_load_dwordx4 v[164:167], v17, {WS}, s83 offen offset:1024 sc1", False)
    a("s_waitcnt vmcnt(0)")
    a("v_add_f32 v168, v160, v161\nv_add_f32 v169, v162, v163\nv_add_f32 v170, v164, v165\nv_add_f32 v171, v166, v167")
    a("v_cmp_u_f32 vcc, v168, v169\nv_cmp_u_f32 s[26:27], v170, v171\ns_or_b64 vcc, vcc, s[26:27]\ns_cbranch_scc0 L_h4done")
    a("s_sub_u32 s82, s82, 1\ns_cbranch_scc1 L_h4done\ns_mov_b64 exec, vcc\ns_branch L_h4poll")
    a.label("L_h4done")
    a("s_mov_b64 exec, -1")
    treduce4(160); treduce4(164)
    for s in (8, 4, 2, 1):
        a(f"v_add_f32_dpp v160, v160, v160 row_ror:{s} row_mask:0xf bank_mask:0xf\nv_add_f32_dpp v164, v164, v164 row_ror:{s} row_mask:0xf bank_mask:0xf")
    a("v_cvt_pk_bf16_f32 v160, v160, v164\nv_lshlrev_b32 v27, 16, v27\nv_and_b32 v164, 0xffff0000, v160\nv_lshlrev_b32 v160, 16, v160")
    a("v_add_f32 v160, v27, v160\nv_cvt_pk_bf16_f32 v160, v160, v160\nv_and_b32 v160, 0xffff0000, v160\nv_add_f32 v160, v160, v164\nv_cvt_pk_bf16_f32 v160, v160, v160")
    a("s_mov_b32 s26, 0x00010001\ns_mov_b32 s27, 0x00010001\ns_mov_b64 exec, s[26:27]")
    a(f"buffer_store_short v160, v24, {OUT}, s85 offen", False)
    if debug == 'pad':
        a.label("L_pad")
        a("s_memrealtime s[88:89]\ns_waitcnt lgkmcnt(0)\ns_sub_u32 s88, s88, s86\ns_cmp_lt_u32 s88, 7000\ns_cbranch_scc1 L_pad")
    if debug:
        a("s_memrealtime s[88:89]\ns_waitcnt lgkmcnt(0)\ns_sub_u32 s88, s88, s86\nv_mov_b32 v160, s88\nv_mov_b32 v161, 0\ns_lshl_b32 s83, s2, 2\ns_mov_b64 exec, 1")
        a(f"buffer_store_dword v160, v161, {DBG}, s83 offen", False)
    a("s_mov_b64 exec, -1")
    a.label("L_fin")
    if stamps:
        stamp()
        n = nst[0]
        a("s_load_dwordx2 s[26:27], s[0:1], 88\ns_waitcnt vmcnt(0) lgkmcnt(0)")
        a(f"s_lshl_b32 s83, s2, 3\ns_add_u32 s83, s83, s3\ns_mul_i32 s83, s83, {8*n}\ns_add_u32 s83, s83, 0x8000000\ns_add_u32 s26, s26, s83\ns_addc_u32 s27, s27, 0")
        a("v_mov_b32 v7, 0\ns_mov_b64 exec, 1")
        for i in range(n):
            r = stampregs[i]
            a(f"v_mov_b32 v8, s{r}\nv_mov_b32 v9, s{r+1}\nglobal_store_dwordx2 v7, v[8:9], s[26:27] offset:{8*i}\ns_nop 1")
        print("stamps:", n, file=sys.stderr)
    a.label("L_end")
    a("s_endpgm")
    a.raw('.section .rodata,"a"\n.p2align 6\n' + f".amdhsa_kernel {NAME}_kernel")
    a.raw("  .amdhsa_next_free_vgpr 256\n  .amdhsa_next_free_sgpr 102\n  .amdhsa_accum_offset 256\n  .amdhsa_group_segment_fixed_size 0\n  .amdhsa_kernarg_size 96")
    a.raw("  .amdhsa_user_sgpr_count 2\n  .amdhsa_user_sgpr_kernarg_segment_ptr 1\n  .amdhsa_system_sgpr_workgroup_id_x 1\n.end_amdhsa_kernel")
    return a.text()

if __name__ == "__main__":
    open("k1.s", "w").write(gen())
    open("k1_st.s", "w").write(gen(stamps=True))
    open("k1_plain.s", "w").write(gen(nt=""))
    open("k1_dbg.s", "w").write(gen(debug=True))
    open("k1_pad.s", "w").write(gen(debug='pad'))
    open("k1_plain_dbg.s", "w").write(gen(nt="", debug=True))
```

```python
import sys
from asmlib import Asm
NAME = "parallel_sum__gqa_block_cached__swiglu_ffn__decode"
HDR = open("cdna_kernels/" + NAME + ".s.ref").read().split("; Override launch")[0]

QP, ML, AB, CNT, EP, GU, OP, WSN = 0x0, 0x10000, 0x20000, 0xB0000, 0xC0000, 0xD0000, 0x100000, 0x200000
OOB = 0x40000000
L_LAND, L_DONE, L_D, L_QRDY, L_CM, L_CL, L_CW, L_CO, L_CC = 0, 256, 272, 280, 284, 288, 292, 296, 300
L_M, L_L, L_F, L_H, L_W, L_C, L_Q, L_X = 512, 640, 768, 896, 1280, 2304, 3328, 5376
RING = 8704
L_T = RING + 131072
L_END = L_T + 4 * 5120
P_K = 96
SPIN = 20000
LSPIN = 400000
NST = 12

def gen(stamps=False, nt=" nt", debug=False, W=22, pre=8, fp=P_K + 40, h3late=True, S=12, LAG=7, mlw=0, look=2, h3at=32, outsc=''):
    assert S + LAG <= 20 and S - LAG >= 2 and 8 * LAG >= 8 * (16 - S) and LAG <= 8
    NDYN = 8 * (16 - S)
    a = Asm()
    X, WS, OUT, DBG = "s[28:31]", "s[32:35]", "s[36:39]", "s[72:75]"
    uid = [0]
    def stamp(i):
        if stamps: a(f"s_memrealtime s[{76+2*i}:{77+2*i}]")
    def srd(b, lo, n):
        a(f"s_mov_b64 s[{b}:{b+1}], s[{lo}:{lo+1}]\ns_mov_b32 s{b+2}, {n}\ns_mov_b32 s{b+3}, 0x20000")
    def allreduce_rows(v, t, op):
        a(f"v_mov_b32 v{t}, v{v}\nv_permlane32_swap_b32 v{v}, v{t}\n{op} v{v}, v{v}, v{t}")
        a(f"v_mov_b32 v{t}, v{v}\nv_permlane16_swap_b32 v{v}, v{t}\n{op} v{v}, v{v}, v{t}")
    def allreduce_inrow(v, op, steps=(8, 4, 2, 1)):
        for s in steps:
            a(f"{op}_dpp v{v}, v{v}, v{v} row_ror:{s} row_mask:0xf bank_mask:0xf")
    def treduce4(r):
        a(f"v_permlane32_swap_b32 v{r}, v{r+1}\nv_permlane32_swap_b32 v{r+2}, v{r+3}")
        a(f"v_add_f32 v{r}, v{r}, v{r+1}\nv_add_f32 v{r+2}, v{r+2}, v{r+3}")
        a(f"v_permlane16_swap_b32 v{r}, v{r+2}\nv_add_f32 v{r}, v{r}, v{r+2}")
    def afrag(xx, dst):
        for d in range(4):
            a(f"v_and_b32 v{dst+d}, v{xx}, v{2+d}")
    def lds_wait(addr_v, off, need, extra=None, sleep=1):
        uid[0] += 1; L = f"L_w{uid[0]}"
        a.label(L)
        a(f"ds_read_b32 v10, {addr_v} offset:{off}")
        if extra: extra()
        a(f"s_waitcnt lgkmcnt(0)\nv_cmp_gt_i32 vcc, {need}, v10\ns_cbranch_vccz {L}d\ns_sub_u32 s45, s45, 1\ns_cbranch_scc1 {L}x")
        if sleep: a(f"s_sleep {sleep}")
        a(f"s_branch {L}")
        a.label(L + "x")
        a("s_mov_b32 s45, 0")
        a.label(L + "d")
    def land_wait(need, extra=None, sleep=1): lds_wait("v8", L_LAND, need, extra, sleep)
    def lds_inc(off):
        a(f"s_mov_b64 exec, 1\nds_add_u32 v9, v11 offset:{off}\ns_mov_b64 exec, -1")
    def merge_pair(ra, rb, t):
        for i in range(4):
            a(f"v_mov_b32_dpp v{t+i}, v{ra+i} row_ror:8 row_mask:0xf bank_mask:0xf\nv_mov_b32_dpp v{t+4+i}, v{rb+i} row_ror:8 row_mask:0xf bank_mask:0xf")
        for i in range(4): a(f"v_permlane32_swap_b32 v{t+i}, v{t+4+i}")
        for i in range(4): a(f"v_add_f32 v{ra+i}, v{ra+i}, v{t+4+i}")
        a("s_mov_b32 exec_lo, 0")
        for i in range(4): a(f"v_add_f32 v{ra+i}, v{rb+i}, v{t+i}")
        a("s_mov_b32 exec_lo, -1")
    def merge_one(ra, t):
        for i in range(4): a(f"v_mov_b32_dpp v{t+i}, v{ra+i} row_ror:8 row_mask:0xf bank_mask:0xf")
        for i in range(4): a(f"v_permlane32_swap_b32 v{t+i}, v{t+4+i}")
        for i in range(4): a(f"v_add_f32 v{ra+i}, v{ra+i}, v{t+4+i}")
    def tagit(regs, wide=False):
        for r in regs: a(f"v_bfi_b32 v{r}, {'s43' if wide else '15'}, v15, v{r}")
    def chk(regs, t, wide=False):
        for r in regs: a(f"v_xor_b32 v{r}, {'s41' if wide else 's40'}, v{r}")
        a(f"v_or3_b32 v{t}, v{regs[0]}, v{regs[1]}, v{regs[2]}")
        rest = regs[3:]
        while len(rest) >= 2:
            a(f"v_or3_b32 v{t}, v{t}, v{rest[0]}, v{rest[1]}"); rest = rest[2:]
        if rest: a(f"v_or_b32 v{t}, v{t}, v{rest[0]}")
        a(f"v_and_b32 v{t}, {'s43' if wide else '15'}, v{t}\nv_cmp_ne_u32 vcc, 0, v{t}")

    a.raw(HDR + f"; @launch grid=(256,1,1) block=(384,1,1) lds={L_END}")
    a.raw('.amdgcn_target "amdgcn-amd-amdhsa--gfx950"\n.text\n' + f".globl {NAME}_kernel\n.p2align 8\n.type {NAME}_kernel,@function\n{NAME}_kernel:")
    stamp(0)
    if debug: a("s_memrealtime s[76:77]")
    a("s_cmp_ge_u32 s2, 256\ns_cbranch_scc1 L_end")
    a("s_load_dwordx16 s[4:19], s[0:1], 0\ns_load_dwordx8 s[20:27], s[0:1], 64")
    a("v_lshrrev_b32 v12, 6, v0\nv_and_b32 v1, 63, v0\nv_readfirstlane_b32 s3, v12")
    a("v_lshrrev_b32 v12, 3, v1\nv_and_b32 v13, 7, v1\nv_lshlrev_b32 v20, 4, v13\nv_lshrrev_b32 v23, 4, v1\nv_lshlrev_b32 v8, 2, v1\nv_mov_b32 v9, 0")
    a("s_and_b32 s46, s2, 63\ns_lshr_b32 s47, s2, 6")
    a("s_lshr_b32 s48, s2, 3\ns_sub_u32 s42, s2, s48\ns_sub_u32 s42, s42, 1\ns_and_b32 s42, s42, 7")
    a(f"s_mov_b32 s45, {LSPIN}")
    if stamps:
        for i in range(1, NST): a(f"s_mov_b64 s[{76+2*i}:{77+2*i}], 0")
    a("s_cmp_eq_u32 s3, 0\ns_cbranch_scc1 L_loader\ns_barrier\ns_branch L_notloader")
    a.label("L_loader")
    a("s_setprio 3")
    a("s_cmp_eq_u32 s42, 7\ns_cselect_b32 s69, 64, 0\ns_cselect_b32 s48, 100, 32\ns_cselect_b32 s49, 104, 64")
    a(f"ds_write_b32 v8, v9 offset:{L_LAND}\nds_write_b32 v8, v9 offset:{L_DONE}")
    a(f"v_mov_b32 v16, s69\nv_mov_b32 v17, s48\nv_mov_b32 v18, s49\nv_mov_b32 v19, {P_K + 12}\nv_mov_b32 v10, -1\nds_write_b128 v9, v[16:19] offset:{L_DONE}\nds_write_b32 v9, v10 offset:{L_D}")
    a("v_lshl_add_u32 v2, v12, 18, v20")
    a("s_bfe_u32 s61, s2, 0x20004\ns_lshl_b32 s66, s61, 21\ns_lshl_b32 s48, s47, 11\ns_add_u32 s66, s66, s48\ns_and_b32 s48, s2, 15\ns_lshl_b32 s48, s48, 7\ns_add_u32 s66, s66, s48")
    qs = (W - 1) % 4
    a(f"s_mov_b32 s31, 0x20000\ns_mov_b32 s30, 8388608\ns_lshl_b32 s65, s69, 10\ns_mov_b32 s68, 0\ns_add_u32 s48, s69, {qs - W + 1 - 4}\nv_mov_b32 v10, s48\ns_mov_b32 s67, 8")
    a("s_waitcnt lgkmcnt(0)\ns_barrier")
    a("s_mov_b64 s[28:29], s[10:11]")
    def body(name, voff, imms, steps):
        a.label(name)
        for q, imm in enumerate(imms):
            a(f"s_add_u32 m0, s65, {RING + 1024*q - imm}")
            if q == qs: a("v_add_u32 v10, 4, v10")
            a(f"s_waitcnt vmcnt({W-1})")
            a(f"buffer_load_dwordx4 {voff}, s[28:31], s66 offen offset:{imm}{nt} lds")
            if q == qs: a(f"ds_write_b32 v8, v10 offset:{L_LAND}")
            if steps[q]: a(f"s_add_u32 s66, s66, {steps[q]}")
        a(f"s_add_u32 s65, s65, 4096\ns_and_b32 s65, s65, 0x1ffff\ns_sub_u32 s67, s67, 1\ns_cmp_lg_u32 s67, 0\ns_cbranch_scc1 {name}")
    def refresh():
        a(f"ds_read_b128 v[16:19], v9 offset:{L_DONE}\ns_waitcnt lgkmcnt(0)\nv_min3_i32 v16, v16, v17, v18\nv_min_i32 v16, v16, v19\nv_readfirstlane_b32 s68, v16")
    def freecheck(name, npieces):
        a(f"s_add_u32 s48, s69, {npieces - 128}\ns_add_u32 s69, s69, {npieces}\ns_cmp_ge_i32 s68, s48\ns_cbranch_scc1 {name}_f")
        a.label(name + "_r")
        refresh()
        a(f"s_cmp_ge_i32 s68, s48\ns_cbranch_scc1 {name}_f\ns_sub_u32 s45, s45, 1\ns_cbranch_scc0 {name}_r\ns_mov_b32 s45, 0")
        a.label(name + "_f")
    body("L_wq", "v2", [0]*4, [8192]*4)
    stamp(1)
    a("s_mov_b32 s48, 229376\nv_mad_u32_u24 v3, v12, s48, v20")
    a("v_bfe_u32 v4, v1, 1, 1\nv_bfe_u32 v25, v1, 2, 2\nv_lshl_add_u32 v4, v4, 2, v25\nv_lshlrev_b32 v4, 8, v4\nv_and_b32 v25, 1, v1\nv_lshl_add_u32 v4, v25, 6, v4\nv_lshl_add_u32 v4, v23, 4, v4")
    a("v_lshlrev_b32 v5, 4, v1")
    a("s_cmp_eq_u32 s42, 7\ns_cbranch_scc1 L_nogu")
    a("s_bfe_u32 s48, s2, 0x10003\ns_lshl_b32 s49, s47, 1\ns_add_u32 s48, s48, s49\ns_mul_i32 s48, s48, 7\ns_add_u32 s48, s48, s42\ns_lshl_b32 s48, s48, 7\ns_mul_i32 s61, s61, 1835008\ns_add_u32 s61, s61, s48")
    a("s_mov_b32 s30, 7340032\ns_mov_b64 s[28:29], s[16:17]\ns_mov_b32 s60, 0")
    a.label("L_gu2")
    a("s_mov_b32 s66, s61\ns_mov_b32 s67, 8")
    body("L_gu", "v3", [0]*4, [7168]*4)
    a("s_mov_b64 s[28:29], s[18:19]\ns_xor_b32 s60, s60, 1\ns_cbranch_scc1 L_gu2")
    a.label("L_nogu")
    stamp(2)
    a("v_and_b32 v6, 3, v12\nv_lshlrev_b32 v6, 4, v6\nv_lshrrev_b32 v25, 5, v1\nv_add_u32 v6, v6, v25\nv_lshl_add_u32 v6, v6, 14, v20")
    a("v_lshl_add_u32 v7, v12, 11, v20")
    a(f"s_mov_b32 s69, {P_K}\ns_mov_b32 s30, 0x4000000\ns_lshr_b32 s62, s2, 3\ns_lshl_b32 s48, s62, 7\ns_add_u32 s48, s48, {CNT}\ns_add_u32 s38, s26, s48\ns_addc_u32 s39, s27, 0\ns_lshl_b32 s62, s62, 21")
    a("s_mov_b32 s33, 0\ns_mov_b32 s34, 0\ns_mov_b32 s36, 0\ns_mov_b64 s[70:71], 0\ns_mov_b32 s37, 0\ns_mov_b32 s35, 0")
    a.label("L_sm")
    a(f"s_cmp_lt_u32 s33, {S}\ns_cbranch_scc1 L_ks")
    a(f"s_sub_u32 s49, s33, s34\ns_cmp_gt_u32 s49, {LAG}\ns_cbranch_scc1 L_vv")
    a("s_cmp_lg_u32 s36, 0\ns_cbranch_scc1 L_vt")
    refresh()
    a(f"s_cmp_ge_u32 s35, {NDYN}\ns_cbranch_scc1 L_close")
    a(f"s_and_b32 s72, s35, 7\ns_lshl_b32 s72, s72, 4\ns_lshr_b32 s48, s35, 3\ns_add_u32 s72, s72, s48\ns_add_u32 s72, s72, {S}\ns_lshl_b32 s66, s72, 14")
    a("s_mov_b32 s73, 0\ns_lshl_b64 s[72:73], s[72:73], s37\ns_or_b64 s[70:71], s[70:71], s[72:73]\ns_add_u32 s37, s37, 8")
    if look == 2:
        a(f"s_mov_b32 s35, {NDYN}\ns_cmp_eq_u32 s33, {S + LAG - 1}\ns_cbranch_scc1 L_kgo\ns_mov_b32 s35, 1\ns_atomic_add s35, s[38:39], 0 glc\ns_branch L_kgo")
    else:
        a(f"s_mov_b32 s35, {NDYN}\ns_branch L_kgo")
    a.label("L_close")
    a(f"s_mov_b32 s36, 1\ns_sub_u32 s48, s33, {S}\nv_mov_b32 v16, s48\nds_write_b32 v9, v16 offset:{L_D}")
    stamp(3)
    a.label("L_vt")
    a("s_cmp_ge_u32 s34, s33\ns_cbranch_scc1 L_kvdone\ns_branch L_vgo")
    a.label("L_vv")
    a(f"s_cmp_lg_u32 s49, {LAG + look}\ns_cbranch_scc1 L_vgo")
    if look == 1: a(f"s_cmp_eq_u32 s33, {S + LAG}\ns_cbranch_scc1 L_vgo")
    a.label("L_qr")
    a(f"ds_read_b32 v16, v9 offset:{L_QRDY}\ns_waitcnt lgkmcnt(0)\nv_cmp_eq_u32 vcc, 0, v16\ns_cbranch_vccz L_qrd\ns_sub_u32 s45, s45, 1\ns_cbranch_scc0 L_qr\ns_mov_b32 s45, 0")
    a.label("L_qrd")
    refresh()
    a("s_mov_b32 s35, 1\ns_atomic_add s35, s[38:39], 0 glc")
    a.label("L_vgo")
    a(f"s_cmp_ge_u32 s34, {S}\ns_cbranch_scc1 L_vdyn")
    a("s_add_u32 s48, s2, s34\ns_and_b32 s48, s48, 7\ns_lshl_b32 s48, s48, 4\ns_add_u32 s48, s48, s34\ns_branch L_vgo2")
    a.label("L_vdyn")
    a("s_and_b32 s48, s70, 0xff\ns_lshr_b64 s[70:71], s[70:71], 8")
    a.label("L_vgo2")
    a("s_lshl_b32 s66, s48, 14\ns_add_u32 s66, s66, s62\ns_add_u32 s34, s34, 1\ns_mov_b64 s[28:29], s[8:9]\ns_mov_b32 s67, 4")
    freecheck("L_vc", 16)
    body("L_vb", "v5", [0, 1024, 2048, 3072], [0, 0, 0, 4096])
    a("s_branch L_sm")
    a.label("L_ks")
    a("s_add_u32 s48, s2, s33\ns_and_b32 s48, s48, 7\ns_lshl_b32 s48, s48, 4\ns_add_u32 s48, s48, s33\ns_lshl_b32 s66, s48, 14")
    a.label("L_kgo")
    a("s_add_u32 s66, s66, s62\ns_add_u32 s33, s33, 1\ns_mov_b64 s[28:29], s[6:7]\ns_mov_b32 s67, 4")
    freecheck("L_kc", 16)
    body("L_kb", "v4", [0, 128, 2048, 2176], [0, 0, 0, 4096])
    a("s_branch L_sm")
    a.label("L_kvdone")
    stamp(4)
    a("s_lshl_b32 s49, s47, 9\ns_lshr_b32 s66, s46, 3\ns_lshl_b32 s66, s66, 9\ns_and_b32 s48, s46, 7\ns_add_u32 s66, s66, s48\ns_lshl_b32 s66, s66, 11\ns_add_u32 s66, s66, s49")
    a("s_mov_b64 s[28:29], s[12:13]\ns_mov_b32 s30, 8388608\ns_mov_b32 s67, 8")
    freecheck("L_oc", 60)
    body("L_wo", "v6", [0, 128, 256, 384], [0, 0, 0, 32768])
    a("s_mul_i32 s66, s46, 114688\ns_add_u32 s66, s66, s49\ns_mov_b64 s[28:29], s[20:21]\ns_mov_b32 s30, 7340032\ns_mov_b32 s67, 7")
    body("L_wd", "v7", [0, 128, 256, 384], [0, 0, 0, 16384])
    stamp(5)
    k = ((W - 1) // 4) * 4
    while k >= 0:
        a(f"s_sub_u32 s48, s69, {k}\nv_mov_b32 v10, s48\ns_waitcnt vmcnt({k})\nds_write_b32 v8, v10 offset:{L_LAND}")
        k -= 4
    a("s_waitcnt lgkmcnt(0)")
    if stamps: a("s_mov_b32 s96, s33\ns_mov_b32 s97, 0")
    a("s_branch L_fin")

    a.label("L_notloader")
    a("s_sub_u32 s44, s3, 1\nv_lshlrev_b32 v25, 5, v1\nv_lshlrev_b32 v26, 3, v1\ns_bfe_u32 s48, s2, 0x20004\ns_lshl_b32 s48, s48, 9")
    a("s_waitcnt lgkmcnt(0)")
    srd(28, 4, 2048); srd(32, 26, WSN)
    a(f"s_mov_b32 s62, {EP}\ns_cmp_gt_u32 s44, 2\ns_cbranch_scc1 L_nox")
    a(f"buffer_load_dwordx4 v[104:107], v25, {X}, 0 offen\nbuffer_load_dwordx4 v[108:111], v25, {X}, 0 offen offset:16\nbuffer_load_dwordx2 v[96:97], v26, {X}, s48 offen")
    a(f"s_and_b32 s48, s2, 7\ns_or_b32 s48, s48, s44\ns_cbranch_scc1 L_nox2\ns_lshl_b32 s48, s2, 4\ns_add_u32 s48, s48, {CNT}\ns_mov_b64 exec, 1")
    a(f"buffer_store_dword v9, v9, {WS}, s48 offen sc1\ns_mov_b64 exec, -1")
    a("s_branch L_nox2")
    a.label("L_nox")
    a("s_getpc_b64 s[48:49]")
    a.label("L_pc")
    a(f"s_sub_u32 s48, s48, L_pc-{NAME}_kernel\ns_subb_u32 s49, s49, 0\nv_add_u32 v25, -256, v0\nv_lshlrev_b32 v25, 7, v25")
    a(f"v_min_u32 v26, L_end-{NAME}_kernel, v25\nglobal_load_dword v96, v26, s[48:49]")
    a.label("L_nox2")
    a(f"buffer_load_dword v112, v9, {WS}, s62 offen sc1")
    a("v_mov_b32 v11, 1\ns_movk_i32 s43, 0x3ff")
    a("v_and_b32 v25, 1, v1\nv_cmp_eq_u32 vcc, 1, v25\nv_mov_b32 v25, 0xffff\nv_mov_b32 v26, 0xffff0000\nv_cndmask_b32 v25, v25, v26, vcc\nv_lshrrev_b32 v26, 1, v13")
    for d in range(4):
        a(f"v_cmp_eq_u32 vcc, {d}, v26\nv_cndmask_b32 v{2+d}, 0, v25, vcc")
    a("v_and_b32 v25, 1, v23\nv_lshlrev_b32 v25, 4, v25\nv_lshl_add_u32 v14, v13, 5, v25\nv_lshrrev_b32 v15, 5, v1\nv_lshl_add_u32 v14, v15, 8, v14")
    a("v_and_b32 v24, 1, v23\nv_lshrrev_b32 v25, 1, v23\nv_lshl_or_b32 v24, v24, 1, v25\nv_lshlrev_b32 v24, 1, v24")
    a(f"v_lshlrev_b32 v21, 4, v1\nv_and_b32 v22, 15, v1\nv_add_u32 v16, {RING}, v21")
    a("s_mov_b32 s50, 0x3db504f3\ns_mov_b32 s51, 0x3fb8aa3b\ns_mov_b32 s52, 0x05040100\ns_mov_b32 s53, 0x07060302\ns_mov_b32 s54, 0x00ff00ff\ns_mov_b32 s55, 0xff00ff00")
    a("s_cmp_eq_u32 s3, 5\ns_cbranch_scc1 L_mgr")
    a("s_lshl_b32 s48, s44, 12\nv_add_u32 v6, s48, v16")
    a("s_lshl_b32 s48, s44, 2\nv_mov_b32 v18, s48")
    a(f"s_mul_i32 s63, s44, 5120\ns_add_u32 s63, s63, {L_T}")
    a("v_mov_b32 v28, 0xff80ff80\nv_mov_b32 v29, v28\nv_mov_b32 v30, v28\nv_mov_b32 v31, v28\nv_add_u32 v25, s63, v21")
    for k in range(5): a(f"ds_write_b128 v25, v[28:31] offset:{1024*k}")
    a("v_lshlrev_b32 v17, 3, v13\nv_lshl_add_u32 v17, v23, 6, v17\nv_add_u32 v17, s63, v17")
    a("v_mov_b32 v28, v17")
    a("s_waitcnt vmcnt(0)\nv_add_u32 v15, 1, v112\nv_readfirstlane_b32 s41, v15\ns_and_b32 s40, s41, 15\ns_and_b32 s41, s41, 0x3ff")
    a("s_cmp_eq_u32 s44, 3\ns_cbranch_scc1 L_kphase")
    a("s_lshl_b32 s56, s44, 5\ns_cmp_lg_u32 s42, 7\ns_cbranch_scc1 L_hasgu\ns_mov_b32 s56, 64\ns_cmp_lg_u32 s44, 0\ns_cbranch_scc1 L_kphase")
    a.label("L_hasgu")
    stamp(1)
    for i in range(8):
        a(f"v_lshlrev_b32 v{76+2*i}, 16, v{104+i}\nv_and_b32 v{77+2*i}, 0xffff0000, v{104+i}")
    for i in range(8): a(f"v_add_f32 v{104+i}, v{76+2*i}, v{77+2*i}")
    for i in range(4): a(f"v_add_f32 v{104+i}, v{104+i}, v{108+i}")
    a("v_add_f32 v104, v104, v105\nv_add_f32 v106, v106, v107\nv_add_f32 v92, v104, v106")
    allreduce_inrow(92, "v_add_f32"); allreduce_rows(92, 93, "v_add_f32")
    a("v_mul_f32 v92, 0x3a800000, v92")
    for i in range(16): a(f"v_sub_f32 v{76+i}, v{76+i}, v92")
    for i in range(4): a(f"v_mul_f32 v{104+i}, v{76+i}, v{76+i}")
    for i in range(4, 16): a(f"v_fmac_f32 v{104+(i&3)}, v{76+i}, v{76+i}")
    a("v_add_f32 v104, v104, v105\nv_add_f32 v106, v106, v107\nv_add_f32 v94, v104, v106")
    allreduce_inrow(94, "v_add_f32"); allreduce_rows(94, 93, "v_add_f32")
    a("v_mul_f32 v94, 0x3a800000, v94\nv_cvt_pk_bf16_f32 v94, v94, v92")
    a("v_and_b32 v92, 0xffff0000, v94\nv_lshlrev_b32 v94, 16, v94")
    a("v_add_f32 v94, 0x3727c5ac, v94\nv_cvt_pk_bf16_f32 v94, v94, v94\nv_and_b32 v94, 0xffff0000, v94")
    a("v_sqrt_f32 v94, v94\nv_cvt_pk_bf16_f32 v94, v94, v94\nv_and_b32 v94, 0xffff0000, v94\nv_rcp_f32 v95, v94")
    a("v_lshlrev_b32 v100, 16, v96\nv_and_b32 v101, 0xffff0000, v96\nv_lshlrev_b32 v102, 16, v97\nv_and_b32 v103, 0xffff0000, v97")
    for i in range(4): a(f"v_sub_f32 v{100+i}, v{100+i}, v92")
    for i in range(4): a(f"v_cvt_pk_bf16_f32 v{100+i}, v{100+i}, v{100+i}")
    for i in range(4): a(f"v_and_b32 v{100+i}, 0xffff0000, v{100+i}")
    for i in range(4): a(f"v_mul_f32 v{76+i}, v{100+i}, v95")
    for i in range(4): a(f"v_fma_f32 v{82+i}, -v{76+i}, v94, v{100+i}")
    for i in range(4): a(f"v_fma_f32 v{76+i}, v{82+i}, v95, v{76+i}")
    for i in range(4): a(f"v_cvt_pk_bf16_f32 v{100+i}, v{76+i}, v{76+i}")
    a(f"s_lshl_b32 s48, s44, 10\nv_add_u32 v25, s48, v21\nds_write_b128 v25, v[100:103] offset:{L_X}\nv_lshl_add_u32 v25, v12, 7, s48")
    a("s_lshl_b32 s48, s56, 10\nv_add_u32 v26, s48, v16\ns_add_u32 s56, s56, 8\ns_mov_b32 s49, 4")
    a("v_mov_b32 v48, 0\nv_mov_b32 v49, 0\nv_mov_b32 v50, 0\nv_mov_b32 v51, 0")
    a.label("L_gv")
    a(f"ds_read_b128 v[64:67], v25 offset:{L_X}\nds_read_b128 v[68:71], v25 offset:{L_X + 16}")
    land_wait("s56")
    for q in range(8): a(f"ds_read_b128 v[{128+4*q}:{131+4*q}], v26 offset:{1024*q}")
    for q in range(8): afrag(64 + q, 160 + 4*q)
    a("v_add_u32 v25, 32, v25\nv_add_u32 v26, 0x2000, v26\ns_add_u32 s56, s56, 8\ns_waitcnt lgkmcnt(0)")
    for q in range(8): a(f"v_mfma_f32_16x16x32_bf16 v[48:51], v[{160+4*q}:{163+4*q}], v[{128+4*q}:{131+4*q}], v[48:51]")
    a("s_sub_u32 s49, s49, 1\ns_cmp_lg_u32 s49, 0\ns_cbranch_scc1 L_gv")
    stamp(2)
    a("s_lshr_b32 s48, s2, 4\ns_lshl_b32 s48, s48, 12\ns_and_b32 s49, s2, 15\ns_lshl_b32 s49, s49, 8\ns_add_u32 s48, s48, s49\ns_cmp_eq_u32 s44, 0\ns_cbranch_scc1 L_gpub")
    a("s_bfe_u32 s48, s2, 0x10003\ns_lshl_b32 s49, s47, 1\ns_add_u32 s48, s48, s49\ns_mul_i32 s48, s48, 7\ns_add_u32 s48, s48, s42\ns_lshl_b32 s48, s48, 8")
    a(f"s_bfe_u32 s49, s2, 0x20004\ns_lshl_b32 s56, s44, 2\ns_add_u32 s49, s49, s56\ns_mul_i32 s49, s49, 14336\ns_add_u32 s48, s48, s49\ns_add_u32 s48, s48, {GU - 4*14336}")
    a.label("L_gpub")
    merge_one(48, 52); tagit(range(48, 52))
    a("s_mov_b32 exec_lo, s54\ns_mov_b32 exec_hi, 0")
    a(f"buffer_store_dwordx4 v[48:51], v14, {WS}, s48 offen sc1")
    a("s_mov_b64 exec, -1")
    stamp(3)
    a.label("L_kphase")
    a(f"s_lshl_b32 s56, s44, 2\ns_add_u32 s56, s56, {P_K}\nv_mov_b32 v19, s56\ns_add_u32 s56, s56, 4\ns_mov_b32 s57, {(P_K & 127) * 1024}")
    a(f"ds_write_b32 v18, v19 offset:{L_DONE}\nv_add_u32 v7, s57, v6")
    a("s_mov_b32 s64, 0x00ff00ff\ns_mov_b32 s65, 0x00ff00ff")
    def reads(dst): [a(f"ds_read_b128 v[{dst+4*q}:{dst+4*q+3}], v7 offset:{1024*q}") for q in range(4)]
    def advance():
        a("s_add_u32 s56, s56, 16\ns_add_u32 s57, s57, 16384\ns_and_b32 s57, s57, 0x1ffff\nv_add_u32 v19, 16, v19\ns_waitcnt lgkmcnt(0)")
        a(f"ds_write_b32 v18, v19 offset:{L_DONE}\nv_add_u32 v7, s57, v6")
    def ktile(src):
        for sg in range(2):
            d = 72 + 4*sg
            for jj in range(2):
                r = src + 8*sg + 4*jj
                a(f"v_mfma_f32_16x16x32_bf16 v[{d}:{d+3}], v[{r}:{r+3}], v[{64+4*jj}:{67+4*jj}], {'0' if jj == 0 else f'v[{d}:{d+3}]'}")
        r = 80
        for sg in range(2):
            d = 72 + 4*sg
            a(f"v_add_f32_dpp v{r+2*sg}, v{d+1}, v{d} row_ror:8 row_mask:0xf bank_mask:0xf\nv_add_f32_dpp v{r+2*sg+1}, v{d+3}, v{d+2} row_ror:8 row_mask:0xf bank_mask:0xf")
        a(f"v_max3_f32 v27, v27, v{r}, v{r+1}\nv_cvt_pk_bf16_f32 v84, v{r}, v{r+1}\nv_max3_f32 v27, v27, v{r+2}, v{r+3}\nv_cvt_pk_bf16_f32 v85, v{r+2}, v{r+3}")
        a(f"v_lshlrev_b32 v{r}, 16, v84\nv_and_b32 v{r+1}, 0xffff0000, v84\nv_lshlrev_b32 v{r+2}, 16, v85\nv_and_b32 v{r+3}, 0xffff0000, v85")
        for c in range(4): a(f"v_mul_f32 v{r+c}, s50, v{r+c}")
        a(f"v_cvt_pk_bf16_f32 v84, v{r}, v{r+1}\nv_cvt_pk_bf16_f32 v85, v{r+2}, v{r+3}")
        a("s_mov_b64 exec, s[64:65]\nds_write_b64 v17, v[84:85]\ns_mov_b64 exec, -1\nv_add_u32 v17, 0x100, v17")
    def roundmax(dst):
        a(f"v_mov_b32 v{dst}, v27\nv_mov_b32_dpp v{dst}, v27 row_ror:8 row_mask:0xf bank_mask:0xc")
        allreduce_rows(dst, 25, "v_max_f32")
        a(f"v_cvt_pk_bf16_f32 v{dst}, v{dst}, v{dst}\nv_and_b32 v{dst}, 0xffff0000, v{dst}\nv_mul_f32 v{dst}, s50, v{dst}\nv_cvt_pk_bf16_f32 v{dst}, v{dst}, v{dst}\nv_and_b32 v{dst}, 0xffff0000, v{dst}")
    def pcalc():
        a("v_lshlrev_b32 v80, 16, v84\nv_and_b32 v81, 0xffff0000, v84\nv_lshlrev_b32 v82, 16, v85\nv_and_b32 v83, 0xffff0000, v85")
        for c in range(4): a(f"v_fma_f32 v{80+c}, v{80+c}, s51, -v30")
        for c in range(4): a(f"v_exp_f32 v{80+c}, v{80+c}")
        a("v_cvt_pk_bf16_f32 v86, v80, v81\nv_cvt_pk_bf16_f32 v87, v82, v83")
    def pvtile():
        for e in range(8):
            for jj in range(2):
                lo = 128 + 8*jj + (e >> 1); hi = lo + 4
                a(f"v_perm_b32 v{96 + 2*e + jj}, v{hi}, v{lo}, s{52 + (e & 1)}")
            if e >= 1: a(f"v_mfma_f32_16x16x16_bf16 v[{28+4*e}:{31+4*e}], v[86:87], v[{94+2*e}:{95+2*e}], v[{28+4*e}:{31+4*e}]")
        a("v_mfma_f32_16x16x16_bf16 v[60:63], v[86:87], v[110:111], v[60:63]")
    for t in range(pre):
        land_wait("s56"); reads(128 + 16*t); advance()
    stamp(4)
    a("v_lshlrev_b32 v25, 8, v13\nv_lshl_add_u32 v25, v23, 4, v25\nv_and_b32 v26, 1, v12\nv_lshl_add_u32 v25, v26, 6, v25\nv_mov_b32 v27, 0xff800000")
    for i in range(32): a(f"v_mov_b32 v{32+i}, 0")
    a("v_lshlrev_b32 v112, 4, v22\nv_lshl_add_u32 v112, v23, 11, v112\nv_add_u32 v112, s63, v112")
    a(f"s_lshl_b32 s48, s44, 10\nv_add_u32 v113, s48, v21\nv_add_u32 v113, {L_T}, v113")
    a(f"s_lshl_b32 s66, s47, 18\ns_lshl_b32 s48, s46, 8\ns_add_u32 s66, s66, s48\ns_lshl_b32 s48, s44, 16\ns_add_u32 s66, s66, s48\ns_add_u32 s66, s66, {OP}")
    a("v_lshlrev_b32 v114, 4, v22\nv_lshl_add_u32 v114, v23, 14, v114")
    a(f"s_lshl_b32 s67, s46, 14\ns_lshl_b32 s48, s44, 12\ns_add_u32 s67, s67, s48\ns_add_u32 s67, s67, {OP}")
    a(f"s_lshl_b32 s68, s2, 11\ns_lshl_b32 s48, s44, 8\ns_add_u32 s68, s68, s48\ns_add_u32 s68, s68, {AB}")
    a("v_lshlrev_b32 v115, 6, v22\nv_lshl_add_u32 v115, v24, 3, v115\nv_add_u32 v115, v115, v18\nv_lshlrev_b32 v116, 4, v12")
    a("s_lshl_b32 s48, s44, 8\nv_lshl_add_u32 v117, v23, 4, s48")
    a("s_mov_b32 s69, 0\nv_mov_b32 v118, v16")
    lds_wait("v9", L_QRDY, 1)
    for jj in range(2): a(f"ds_read_b128 v[{64+4*jj}:{67+4*jj}], v25 offset:{L_Q + 128*jj}")
    a("s_waitcnt lgkmcnt(0)")
    stamp(5)
    for t in range(pre): ktile(128 + 16*t)
    a(f"s_mov_b32 s58, {pre}\ns_mov_b32 s59, 0\ns_mov_b32 s60, 0")
    a.label("L_ck")
    land_wait("s56")
    a.label("L_ck2")
    reads(128); advance(); ktile(128)
    a(f"s_add_u32 s58, s58, 1\ns_cmp_lt_u32 s58, {S}\ns_cbranch_scc1 L_ck\ns_cmp_lg_u32 s58, {S}\ns_cbranch_scc1 L_cv")
    roundmax(29)
    a("v_mul_f32 v30, s51, v29")
    stamp(6)
    a.label("L_cv")
    a("ds_read_b64 v[84:85], v28\nv_add_u32 v28, 0x100, v28\ns_waitcnt lgkmcnt(0)")
    pcalc()
    a("s_add_u32 s59, s59, 1\ns_cmp_eq_u32 s59, s58\ns_cbranch_scc1 L_clast")
    land_wait("s56"); reads(128); advance(); pvtile()
    a(f"s_sub_u32 s48, s58, s59\ns_cmp_gt_u32 s48, {LAG}\ns_cbranch_scc1 L_cv\ns_cmp_lg_u32 s60, 0\ns_cbranch_scc1 L_cv")
    a(f"s_sub_u32 s48, s58, {S}")
    a.label("L_cw")
    a(f"ds_read_b32 v10, v8 offset:{L_LAND}\nds_read_b32 v25, v9 offset:{L_D}\ns_waitcnt lgkmcnt(0)")
    a("v_cmp_ne_u32 vcc, s48, v25\ns_cbranch_vccz L_resc\nv_cmp_gt_i32 vcc, s56, v10\ns_cbranch_vccz L_ck2\ns_sub_u32 s45, s45, 1\ns_cbranch_scc1 L_cwx\ns_sleep 1\ns_branch L_cw")
    a.label("L_cwx")
    a("s_mov_b32 s45, 0")
    a.label("L_resc")
    stamp(7)
    a("s_mov_b32 s60, 1")
    roundmax(31)
    a(f"s_lshl_b32 s48, s44, 5\nv_lshl_add_u32 v88, v13, 2, s48\nds_write_b32 v88, v31 offset:{L_M}")
    lds_inc(L_CM)
    a("v_and_b32 v25, 31, v1\nv_lshlrev_b32 v25, 2, v25")
    a("v_lshlrev_b32 v26, 3, v13\nv_lshl_add_u32 v26, v23, 6, v26\nv_and_b32 v89, 1, v12\nv_lshl_add_u32 v26, v89, 8, v26\nv_add_u32 v26, s63, v26")
    NL = (S + LAG + 1) // 2
    for i in range(NL): a(f"ds_read_b64 v[{144+2*i}:{145+2*i}], v26 offset:{512*i}")
    lds_wait("v9", L_CM, 4, lambda: a(f"ds_read_b32 v31, v25 offset:{L_M}"))
    allreduce_inrow(31, "v_max_f32", (8,))
    a("v_mov_b32 v26, v31\nv_permlane16_swap_b32 v31, v26\nv_max_f32 v31, v31, v26\nv_mul_f32 v30, s51, v31")
    a(f"v_fma_f32 v29, v29, s51, -v30\nv_exp_f32 v29, v29\nds_write_b32 v88, v29 offset:{L_F}")
    a(f"v_and_b32 v25, 1, v23\nv_lshl_add_u32 v25, v25, 4, s48\nds_read_b128 v[80:83], v25 offset:{L_F}")
    for i in range(2*NL): a(f"v_lshlrev_b32 v{176+2*i}, 16, v{144+i}\nv_and_b32 v{177+2*i}, 0xffff0000, v{144+i}")
    for i in range(4*NL): a(f"v_fma_f32 v{176+i}, v{176+i}, s51, -v30")
    for i in range(4*NL): a(f"v_exp_f32 v{176+i}, v{176+i}")
    for i in range(4, 4*NL, 2): a(f"v_pk_add_f32 v[{176+(i&2)}:{177+(i&2)}], v[{176+(i&2)}:{177+(i&2)}], v[{176+i}:{177+i}]")
    a("v_pk_add_f32 v[176:177], v[176:177], v[178:179]\nv_add_f32 v176, v176, v177")
    allreduce_inrow(176, "v_add_f32", (8,)); allreduce_rows(176, 26, "v_add_f32")
    a(f"ds_write_b32 v88, v176 offset:{L_L}")
    lds_inc(L_CL)
    a("s_waitcnt lgkmcnt(0)")
    for e in range(8):
        a(f"v_pk_mul_f32 v[{32+4*e}:{33+4*e}], v[{32+4*e}:{33+4*e}], v[80:81]\nv_pk_mul_f32 v[{34+4*e}:{35+4*e}], v[{34+4*e}:{35+4*e}], v[82:83]")
    a(f"s_lshl_b32 s69, s58, 5\ns_add_u32 s69, s69, {P_K}\ns_and_b32 s48, s69, 127\ns_add_u32 s48, s48, s44\ns_lshl_b32 s48, s48, 10\nv_add_u32 v118, s48, v16\ns_add_u32 s69, s69, 32")
    a("s_branch L_cv")
    a.label("L_clast")
    land_wait("s56", lambda: reads(128), sleep=0)
    stamp(8)
    pvtile()
    a("s_mov_b32 exec_hi, 0")
    for e in range(8): a(f"ds_write_b128 v112, v[{32+4*e}:{35+4*e}] offset:{256*e}")
    lds_inc(L_CO)
    lds_wait("v9", L_CO, 4, lambda: [a(f"ds_read_b128 v[{128+4*k}:{131+4*k}], v113 offset:{5120*k}") for k in range(4)], sleep=0)
    for k in (0, 2): a(f"v_pk_add_f32 v[{128+k}:{129+k}], v[{128+k}:{129+k}], v[{132+k}:{133+k}]\nv_pk_add_f32 v[{136+k}:{137+k}], v[{136+k}:{137+k}], v[{140+k}:{141+k}]")
    for k in (0, 2): a(f"v_pk_add_f32 v[{128+k}:{129+k}], v[{128+k}:{129+k}], v[{136+k}:{137+k}]")
    tagit(range(128, 132))
    a(f"buffer_store_dwordx4 v[128:131], v114, {WS}, s66 offen sc1")
    def h3loads(): [a(f"buffer_load_dwordx4 v[{144+4*k}:{147+4*k}], v21, {WS}, s67 offen offset:{1024*k} sc1") for k in range(4)]
    if not h3late: h3loads()
    stamp(9)
    if h3late and h3at < 32:
        a(f"s_sub_u32 s48, s69, {32 - h3at}")
        land_wait("s48"); h3loads(); land_wait("s69")
    else:
        land_wait("s69")
        if h3late: h3loads()
    for u in range(8): a(f"ds_read_b128 v[{192+4*u}:{195+4*u}], v118 offset:{4096*u}")
    lds_wait("v9", L_CW, 1, lambda: [a(f"ds_read_b128 v[{176+4*k}:{179+4*k}], v117 offset:{L_W + 64*k}") for k in range(4)])
    a(f"s_mov_b32 s49, {SPIN}")
    a.label("L_h3poll")
    a("s_waitcnt vmcnt(0)")
    chk(list(range(144, 160)), 164)
    for i in range(4): a(f"v_mul_f32 v{160+i}, v{144+i}, v{176+i}")
    a("s_cbranch_vccz L_h3done\ns_sub_u32 s49, s49, 1\ns_cbranch_scc1 L_h3done")
    h3loads()
    a("s_branch L_h3poll")
    a.label("L_h3done")
    for k in range(1, 4):
        for i in range(4): a(f"v_fmac_f32 v{160+i}, v{144+4*k+i}, v{176+4*k+i}")
    stamp(10)
    treduce4(160)
    a(f"ds_write_b32 v115, v160 offset:{L_C}")
    lds_inc(L_CC)
    lds_wait("v9", L_CC, 4, lambda: [a(f"ds_read_b128 v[{32+4*u}:{35+4*u}], v116 offset:{L_C + 128*u}") for u in range(8)], sleep=0)
    for u in range(8): a(f"v_pk_add_f32 v[{32+4*u}:{33+4*u}], v[{32+4*u}:{33+4*u}], v[{34+4*u}:{35+4*u}]")
    for u in range(8): a(f"v_add_f32 v{32+4*u}, v{32+4*u}, v{33+4*u}")
    for u in range(8): a(f"v_cvt_pk_bf16_f32 v{32+4*u}, v{32+4*u}, v{32+4*u}")
    for u in range(8):
        afrag(32 + 4*u, 64 + 4*u)
        if u >= 1: a(f"v_mfma_f32_16x16x32_bf16 v[128:131], v[{60+4*u}:{63+4*u}], v[{188+4*u}:{191+4*u}], {'0' if u == 1 else 'v[128:131]'}")
    a("v_mfma_f32_16x16x32_bf16 v[128:131], v[92:95], v[220:223], v[128:131]")
    merge_one(128, 132); tagit(range(128, 132), True)
    a("s_mov_b32 exec_lo, s54\ns_mov_b32 exec_hi, 0")
    a(f"buffer_store_dwordx4 v[128:131], v14, {WS}, s68 offen sc1")
    a("s_mov_b64 exec, -1")
    a("s_branch L_fin")

    a.label("L_mgr")
    srd(36, 22, 2048)
    if debug: srd(72, 24, 256)
    a(f"s_lshl_b32 s56, s47, 12\ns_lshl_b32 s48, s46, 5\ns_add_u32 s56, s56, s48\ns_add_u32 s56, s56, {ML}")
    a("v_lshrrev_b32 v28, 2, v1\nv_lshlrev_b32 v28, 11, v28\nv_and_b32 v25, 3, v1\nv_lshl_add_u32 v28, v25, 3, v28")
    a(f"s_lshl_b32 s59, s2, 11\ns_add_u32 s59, s59, {AB}")
    a("s_and_b32 s60, s2, 7\ns_lshl_b32 s60, s60, 5\ns_lshr_b32 s48, s2, 3\ns_add_u32 s60, s60, s48\ns_lshl_b32 s61, s60, 3")
    a(f"buffer_load_ushort v27, v24, {X}, s61 offen")
    a(f"s_movk_i32 s48, 14336\nv_mul_u32_u24 v26, s48, v23\nv_lshl_add_u32 v26, v22, 4, v26\nv_cmp_gt_u32 s[64:65], 14, v22\nv_mov_b32 v25, {OOB}\nv_cndmask_b32 v26, v25, v26, s[64:65]")
    a(f"s_mul_i32 s66, s46, 224\ns_add_u32 s66, s66, {GU}\ns_add_u32 s67, s66, 57344")
    a("s_waitcnt vmcnt(0)\nv_add_u32 v15, 1, v112\nv_readfirstlane_b32 s41, v15\ns_and_b32 s40, s41, 15\ns_and_b32 s41, s41, 0x3ff")
    stamp(1)
    a(f"s_cmp_eq_u32 s42, 7\ns_cselect_b32 s48, 64, 0\ns_add_u32 s48, s48, {fp}")
    land_wait("s48", sleep=4)
    def qloads():
        a("s_lshl_b32 s48, s47, 14")
        for ks in range(4):
            for qd in range(4):
                r = 192 + 16*ks + 4*qd
                a(f"buffer_load_dwordx4 v[{r}:{r+3}], v21, {WS}, s48 offen offset:{1024*qd} sc1")
            if ks < 3: a("s_add_u32 s48, s48, 4096")
    def hloads():
        a(f"buffer_load_dwordx4 v[128:131], v26, {WS}, s66 offen sc1\nbuffer_load_dwordx4 v[132:135], v26, {WS}, s67 offen sc1")
    a(f"s_mov_b32 s49, {SPIN}")
    hloads()
    a.label("L_qpoll")
    qloads()
    a("s_waitcnt vmcnt(0)")
    chk(list(range(192, 256)), 32)
    a("s_cbranch_vccz L_qdone\ns_sub_u32 s49, s49, 1\ns_cbranch_scc1 L_qdone\ns_sleep 8\ns_branch L_qpoll")
    a.label("L_qdone")
    stamp(2)
    a("v_lshlrev_b32 v25, 3, v1")
    for i in range(0, 16, 2): a(f"v_pk_add_f32 v[{192+i}:{193+i}], v[{192+i}:{193+i}], v[{208+i}:{209+i}]\nv_pk_add_f32 v[{224+i}:{225+i}], v[{224+i}:{225+i}], v[{240+i}:{241+i}]")
    for i in range(0, 16, 2): a(f"v_pk_add_f32 v[{192+i}:{193+i}], v[{192+i}:{193+i}], v[{224+i}:{225+i}]")
    for i in range(8): a(f"v_cvt_pk_bf16_f32 v{208+i}, v{192+2*i}, v{193+2*i}")
    for qd in range(4): a(f"ds_write_b64 v25, v[{208+2*qd}:{209+2*qd}] offset:{L_Q + 512*qd}")
    a(f"ds_write_b32 v9, v11 offset:{L_QRDY}")
    stamp(3)
    a(f"s_mov_b32 s49, {SPIN}")
    a.label("L_hpoll")
    chk(list(range(128, 136)), 32)
    a("s_and_b64 vcc, vcc, s[64:65]\ns_cbranch_scc0 L_hdone\ns_sub_u32 s49, s49, 1\ns_cbranch_scc1 L_hdone\ns_sleep 16")
    hloads()
    a("s_waitcnt vmcnt(0)\ns_branch L_hpoll")
    a.label("L_hdone")
    treduce4(128); treduce4(132)
    a("v_cvt_pk_bf16_f32 v128, v128, v132\nv_and_b32 v132, 0xffff0000, v128\nv_lshlrev_b32 v128, 16, v128")
    a("v_mul_f32 v129, s51, v128\nv_exp_f32 v129, -v129\nv_add_f32 v129, 1.0, v129\nv_rcp_f32 v129, v129\nv_mul_f32 v128, v128, v129")
    a("v_cvt_pk_bf16_f32 v128, v128, v128\nv_and_b32 v128, 0xffff0000, v128\nv_mul_f32 v128, v128, v132\nv_cvt_pk_bf16_f32 v128, v128, v128")
    a(f"v_lshlrev_b32 v25, 4, v22\nv_lshl_add_u32 v25, v24, 1, v25\nds_write_b32 v25, v128 offset:{L_H}\nv_lshlrev_b32 v25, 2, v12")
    for u in range(7): a(f"ds_read_b32 v{32+u}, v25 offset:{L_H + 32*u}")
    a("s_waitcnt lgkmcnt(0)")
    for u in range(7): afrag(32 + u, 64 + 4*u)
    stamp(4)
    a("v_and_b32 v25, 31, v1\nv_lshlrev_b32 v25, 2, v25")
    lds_wait("v9", L_CL, 4, lambda: a(f"ds_read_b32 v18, v25 offset:{L_M}\nds_read_b32 v19, v25 offset:{L_L}\nds_read_b32 v30, v9 offset:{L_D}\nds_read_b32 v31, v9 offset:{L_LAND}"), sleep=2)
    allreduce_inrow(18, "v_max_f32", (8,)); allreduce_inrow(19, "v_add_f32", (8,))
    a("v_mov_b32 v26, v18\nv_mov_b32 v29, v19\nv_permlane16_swap_b32 v18, v26\nv_permlane16_swap_b32 v19, v29\nv_max_f32 v18, v18, v26\nv_add_f32 v19, v19, v29")
    tagit((18, 19), True)
    a(f"s_mov_b64 exec, 0xff\nbuffer_store_dwordx2 v[18:19], v28, {WS}, s56 offen sc1\ns_mov_b64 exec, -1")
    stamp(5)
    a(f"v_readfirstlane_b32 s57, v30\ns_lshl_b32 s57, s57, 5\ns_add_u32 s57, s57, {P_K + 32*S + 32}\ns_sub_u32 s48, s57, {32 + mlw}")
    land_wait("s48", sleep=4)
    a(f"s_lshr_b32 s48, s46, 3\ns_lshl_b32 s48, s48, 11\ns_add_u32 s48, s48, {ML}\nv_lshlrev_b32 v26, 5, v1\ns_mov_b32 s49, {SPIN}")
    a.label("L_wpoll")
    a(f"buffer_load_dwordx4 v[32:35], v26, {WS}, s48 offen sc1\nbuffer_load_dwordx4 v[36:39], v26, {WS}, s48 offen offset:16 sc1\ns_waitcnt vmcnt(0)")
    chk(list(range(32, 40)), 40, True)
    a("s_cbranch_vccz L_wdone\ns_sub_u32 s49, s49, 1\ns_cbranch_scc1 L_wdone\ns_sleep 4\ns_branch L_wpoll")
    a.label("L_wdone")
    M = [32, 34, 36, 38]; Lr = [33, 35, 37, 39]
    for c in range(4): a(f"v_mov_b32 v{40+c}, v{M[c]}")
    for s in (8, 4, 2, 1):
        for c in range(4): a(f"v_max_f32_dpp v{40+c}, v{40+c}, v{40+c} row_ror:{s} row_mask:0xf bank_mask:0xf")
    for sw in ("32", "16"):
        for c in range(4): a(f"v_mov_b32 v{44+c}, v{40+c}")
        for c in range(4): a(f"v_permlane{sw}_swap_b32 v{40+c}, v{44+c}")
        for c in range(4): a(f"v_max_f32 v{40+c}, v{40+c}, v{44+c}")
    for c in range(4): a(f"v_sub_f32 v{40+c}, v{M[c]}, v{40+c}")
    for c in range(4): a(f"v_mul_f32 v{40+c}, s51, v{40+c}")
    for c in range(4): a(f"v_exp_f32 v{40+c}, v{40+c}")
    for c in range(4): a(f"v_mul_f32 v{Lr[c]}, v{40+c}, v{Lr[c]}")
    for s in (8, 4, 2, 1):
        for c in range(4): a(f"v_add_f32_dpp v{Lr[c]}, v{Lr[c]}, v{Lr[c]} row_ror:{s} row_mask:0xf bank_mask:0xf")
    for sw in ("32", "16"):
        for c in range(4): a(f"v_mov_b32 v{44+c}, v{Lr[c]}")
        for c in range(4): a(f"v_permlane{sw}_swap_b32 v{Lr[c]}, v{44+c}")
        for c in range(4): a(f"v_add_f32 v{Lr[c]}, v{Lr[c]}, v{44+c}")
    for c in range(4): a(f"v_rcp_f32 v{Lr[c]}, v{Lr[c]}")
    for c in range(4): a(f"v_mul_f32 v{40+c}, v{40+c}, v{Lr[c]}")
    a(f"ds_write_b128 v21, v[40:43] offset:{L_W}\nds_write_b32 v9, v11 offset:{L_CW}")
    stamp(6)
    a("s_and_b32 s48, s57, 127\ns_lshl_b32 s48, s48, 10\nv_add_u32 v16, s48, v16\ns_add_u32 s57, s57, 4")
    a(f"s_lshr_b32 s58, s60, 6\ns_lshl_b32 s58, s58, 17\ns_and_b32 s48, s60, 63\ns_lshl_b32 s48, s48, 4\ns_add_u32 s58, s58, s48\ns_add_u32 s58, s58, {AB}\nv_lshlrev_b32 v29, 11, v1")
    for u in range(7):
        rd = lambda: [a(f"ds_read_b128 v[{128+4*cb}:{131+4*cb}], v16 offset:{4096*u + 1024*cb}") for cb in range(4)]
        if u == 6: land_wait("s57", rd, sleep=0)
        else:
            land_wait("s57", sleep=(4 if u == 0 else 1)); rd(); a("s_add_u32 s57, s57, 4\ns_waitcnt lgkmcnt(0)")
        for cb in range(4):
            a(f"v_mfma_f32_16x16x32_bf16 v[{96+4*cb}:{99+4*cb}], v[{64+4*u}:{67+4*u}], v[{128+4*cb}:{131+4*cb}], {'0' if u == 0 else f'v[{96+4*cb}:{99+4*cb}]'}")
    stamp(7)
    merge_pair(96, 100, 32); merge_pair(104, 108, 40); tagit(list(range(96, 100)) + list(range(104, 108)), True)
    a("s_mov_b64 exec, s[54:55]")
    a(f"buffer_store_dwordx4 v[96:99], v14, {WS}, s59 offen offset:1024 sc1\nbuffer_store_dwordx4 v[104:107], v14, {WS}, s59 offen offset:1536 sc1")
    a(f"s_mov_b64 exec, -1\ns_mov_b32 s49, {SPIN}")
    stamp(8)
    lds_wait("v9", L_CC, 4)
    a.label("L_h4poll")
    a(f"buffer_load_dwordx4 v[160:163], v29, {WS}, s58 offen sc1\nbuffer_load_dwordx4 v[164:167], v29, {WS}, s58 offen offset:1024 sc1\ns_waitcnt vmcnt(0)")
    chk(list(range(160, 168)), 168, True)
    a("s_cbranch_vccz L_h4done\ns_sub_u32 s49, s49, 1\ns_cbranch_scc1 L_h4done\ns_mov_b64 exec, vcc\ns_branch L_h4poll")
    a.label("L_h4done")
    a("s_mov_b64 exec, -1")
    stamp(9)
    treduce4(160); treduce4(164)
    for s in (8, 4, 2, 1):
        a(f"v_add_f32_dpp v160, v160, v160 row_ror:{s} row_mask:0xf bank_mask:0xf\nv_add_f32_dpp v164, v164, v164 row_ror:{s} row_mask:0xf bank_mask:0xf")
    a("v_cvt_pk_bf16_f32 v160, v160, v164\nv_lshlrev_b32 v27, 16, v27\nv_and_b32 v164, 0xffff0000, v160\nv_lshlrev_b32 v160, 16, v160")
    a("v_add_f32 v160, v27, v160\nv_cvt_pk_bf16_f32 v160, v160, v160\nv_and_b32 v160, 0xffff0000, v160\nv_add_f32 v160, v160, v164\nv_cvt_pk_bf16_f32 v160, v160, v160")
    a("s_mov_b32 s26, 0x00010001\ns_mov_b32 s27, 0x00010001\ns_mov_b64 exec, s[26:27]")
    a(f"buffer_store_short v160, v24, {OUT}, s61 offen{outsc}")
    a("s_cmp_lg_u32 s2, 0\ns_cbranch_scc1 L_noep\ns_mov_b64 exec, 1")
    a(f"buffer_store_dword v15, v9, {WS}, s62 offen sc1")
    a.label("L_noep")
    if debug:
        a("s_memrealtime s[78:79]\ns_waitcnt lgkmcnt(0)\ns_sub_u32 s78, s78, s76\nv_mov_b32 v160, s78\ns_lshl_b32 s48, s2, 2\ns_mov_b64 exec, 1")
        a(f"buffer_store_dword v160, v9, {DBG}, s48 offen")
    a.label("L_fin")
    if stamps:
        stamp(NST - 1)
        a("s_load_dwordx2 s[26:27], s[0:1], 88\ns_waitcnt vmcnt(0) lgkmcnt(0)")
        a(f"s_mul_i32 s48, s2, 6\ns_add_u32 s48, s48, s3\ns_mul_i32 s48, s48, {8*NST}\ns_add_u32 s48, s48, 0x8000000\ns_add_u32 s26, s26, s48\ns_addc_u32 s27, s27, 0")
        a("s_mov_b64 exec, 1\nv_mov_b32 v7, 0")
        for k in range(NST):
            r = 76 + 2*k
            a(f"v_mov_b32 v8, s{r}\nv_mov_b32 v9, s{r+1}\nglobal_store_dwordx2 v7, v[8:9], s[26:27] offset:{8*k}\ns_nop 1")
    a.label("L_end")
    a("s_endpgm")
    a.raw('.section .rodata,"a"\n.p2align 6\n' + f".amdhsa_kernel {NAME}_kernel")
    a.raw("  .amdhsa_next_free_vgpr 256\n  .amdhsa_next_free_sgpr 102\n  .amdhsa_accum_offset 256\n  .amdhsa_group_segment_fixed_size 0\n  .amdhsa_kernarg_size 96")
    a.raw("  .amdhsa_user_sgpr_count 2\n  .amdhsa_user_sgpr_kernarg_segment_ptr 1\n  .amdhsa_system_sgpr_workgroup_id_x 1\n.end_amdhsa_kernel")
    return a.text()

if __name__ == "__main__":
    b = dict(look=1, S=13, LAG=5)
    open("k7_w20.s", "w").write(gen(W=20, **b))
    open("k7_w22.s", "w").write(gen(W=22, **b))
    open("k7_w20sc.s", "w").write(gen(W=20, outsc=" sc0 sc1", **b))
    open("k7_w20h16.s", "w").write(gen(W=20, h3at=16, mlw=16, **b))
    open("k7_w20h8.s", "w").write(gen(W=20, h3at=8, mlw=16, **b))
```
